```python
import torch

def _softmax(x, axis=-1):
    return torch.softmax(x, dim=axis)
def _gelu(x):
    return torch.nn.functional.gelu(x, approximate="tanh")
def _silu(x):
    return torch.nn.functional.silu(x)
def _sigmoid(x):
    return torch.sigmoid(x)
def _layernorm(x, axis=-1, eps=1e-5):
    m = x.mean(dim=axis, keepdim=True)
    v = x.var(dim=axis, keepdim=True, unbiased=False)
    return (x - m) / torch.sqrt(v + eps)
def _scatter_add(tgt, idx, src, axis=0):
    return tgt.clone().index_add_(axis, idx, src)
def _segment_sum(src, seg, n):
    out = torch.zeros((n,) + src.shape[1:], dtype=src.dtype)
    return out.index_add_(0, seg, src)
def _pad(x, pw):
    flat = tuple(v for pair in reversed(pw) for v in pair)
    return torch.nn.functional.pad(x, flat)

kernel_name = 'gated_mix__mha_block__dense_activation_relu__prompt'

def setup_inputs():

    _w = (lambda a: (lambda t: t.to(torch.bfloat16) if t.is_floating_point() else t)(torch.as_tensor(a)))
    def _A_setup():
        B, S, D, H = 1, 2048, 512, 32
        return {
            "x": _w((lambda *s: torch.randn(*s, dtype=torch.bfloat16) * 0.05)(B, S, D)),
            "wqkv": _w((lambda *s: torch.randn(*s, dtype=torch.bfloat16) * 0.8)(D, 3 * D)),
            "wo": _w((lambda *s: torch.randn(*s, dtype=torch.bfloat16) * 0.2)(D, D)),
        }
    _A_in = _A_setup()

    def _B_setup():
        B, S, D, Dff = 1, 2048, 512, 1792
        return {
            "x": _w((lambda *s: torch.randn(*s, dtype=torch.bfloat16) * 0.05)(B, S, D)),
            "w1": _w((lambda *s: torch.randn(*s, dtype=torch.bfloat16) * 0.05)(D, Dff)),
            "w2": _w((lambda *s: torch.randn(*s, dtype=torch.bfloat16) * 0.05)(Dff, D)),
        }
    _B_in = _B_setup()

    return {
        "A_x": _A_in["x"],
        "A_wqkv": _A_in["wqkv"],
        "A_wo": _A_in["wo"],
        "B_x": _B_in["x"],
        "B_w1": _B_in["w1"],
        "B_w2": _B_in["w2"],
        "gate_w": _w((lambda *s: torch.randn(*s, dtype=torch.bfloat16) * 0.05)(512) * 16.0),
    }

def reference(A_x, A_wqkv, A_wo, B_x, B_w1, B_w2, gate_w):
    def _A_ref(x, wqkv, wo):
        B, S, D = x.shape
        H = 32
        Dh = D // H
        qkv = (lambda x, *d: x.permute(*d))((x @ wqkv).reshape(B, S, 3, H, Dh), 2, 0, 3, 1, 4)
        q, k, v = qkv[0], qkv[1], qkv[2]
        scores = torch.einsum("bhqd,bhkd->bhqk", q, k) * (Dh ** -0.5)
        p = _softmax(scores, axis=-1)
        o = torch.einsum("bhqk,bhkd->bhqd", p, v)
        return (lambda x, *d: x.permute(*d))(o, 0, 2, 1, 3).reshape(B, S, D) @ wo

    def _B_ref(x, w1, w2):
        h = torch.einsum("bsd,df->bsf", x, w1)
        zero = torch.zeros_like(h)
        h = torch.maximum(h, zero)
        return torch.einsum("bsf,fd->bsd", h, w2)

    x = A_x
    g = _sigmoid((x * gate_w).sum(-1, keepdims=True))
    a = _A_ref(x, A_wqkv, A_wo)
    b = _B_ref(x, B_w1, B_w2)
    return g * a + (1 - g) * b
```

```python
from gen import *

K2_RED = 131072
K2_FLG = 131072 + 16384
K2_LDS = K2_FLG + 64 + 4096
STAGES = [4, 8, 16, 36]

def gen_k2():
    a = Asm()
    a(f"""
    s_cmp_ge_u32 s2, 256
    s_cbranch_scc1 K2_END
    s_load_dwordx2 s[62:63], s[0:1], 72     ; ws
    v_lshrrev_b32 v1, 6, v0
    v_and_b32 v0, 63, v0
    s_and_b32 s32, s2, 7
    v_readfirstlane_b32 s37, v1
    s_lshr_b32 s33, s2, 3
    s_lshl_b32 s34, s32, 2
    s_lshr_b32 s47, s33, 3
    s_add_u32 s34, s34, s47                 ; head
    s_and_b32 s35, s33, 7                   ; b
    s_lshr_b32 s36, s32, 1
    s_lshl_b32 s36, s36, 3
    s_add_u32 s36, s36, s35                 ; tokb64
    s_and_b32 s38, s32, 1
    s_lshl_b32 s38, s38, 2
    s_add_u32 s38, s38, s47                 ; colt
    v_lshlrev_b32 v1, 4, v0                 ; lane*16
    s_waitcnt lgkmcnt(0)
    """)
    srd(a, 16, 62, WS_BYTES)
    a(f"""
    s_cmp_ge_u32 s37, 4
    s_cbranch_scc1 K2_ATT
    """)
    a(f"""
    s_setprio 2
    v_mov_b32 v2, 0
    v_lshlrev_b32 v3, 2, v0
    v_add_u32 v3, {K2_FLG}, v3
    v_cmp_gt_u32 vcc, 16, v0
    s_and_saveexec_b64 s[40:41], vcc
    ds_write_b32 v3, v2
    s_mov_b64 exec, s[40:41]
    s_lshl_b32 s42, s34, 17
    s_add_u32 s42, s42, {KVF}
    s_lshl_b32 s43, s37, 10                 ; w*1024
    s_add_u32 s42, s42, s43
    """)
    for i in range(32):
        a(f"""
        s_add_u32 m0, s43, {i*4096}
        s_add_u32 s44, s42, {i*4096}
        buffer_load_dwordx4 v1, s[16:19], s44 offen lds
        """)
        if i == 1:
            a("s_waitcnt lgkmcnt(0)\ns_barrier")
    a(f"""
    s_mul_i32 s45, s36, {2*112*1024}
    s_mul_i32 s47, s37, {28*1024}
    s_add_u32 s45, s45, s47
    s_add_u32 s45, s45, {HF}                ; h0
    s_add_u32 s46, s45, {112*1024}          ; h1
    s_mul_i32 s48, s38, {2*112*1024}
    s_add_u32 s48, s48, s47
    s_add_u32 s48, s48, {W2F}               ; w0
    s_add_u32 s49, s48, {112*1024}          ; w1
    """)
    GA = 8
    GB = 72
    def gload(buf, off):
        b = GB + buf*16
        return f"""
        buffer_load_dwordx4 {vr(b,4)}, v1, s[16:19], s48 offen offset:{off}
        buffer_load_dwordx4 {vr(b+4,4)}, v1, s[16:19], s45 offen offset:{off}
        buffer_load_dwordx4 {vr(b+8,4)}, v1, s[16:19], s46 offen offset:{off}
        buffer_load_dwordx4 {vr(b+12,4)}, v1, s[16:19], s49 offen offset:{off}
        """
    def gmfma(buf):
        b = GB + buf*16
        w0, h0, h1, w1 = vr(b,4), vr(b+4,4), vr(b+8,4), vr(b+12,4)
        L = []
        for cb, w_ in ((0, w0), (1, w1)):
            for tb, h_ in ((0, h0), (1, h1)):
                acc = vr(GA + (cb*2+tb)*16, 16)
                L.append(f"v_mfma_f32_32x32x16_bf16 {acc}, {w_}, {h_}, {acc}")
        return "\n".join(L)
    for s in range(4): a(gload(s, s*1024))
    for r in range(GA, GA+64): a(f"v_mov_b32 v{r}, 0")
    a(f"v_mov_b32 v2, 1\nv_mov_b32 v3, {K2_FLG}")
    tot = 0
    for s, nt in enumerate(STAGES):
        tot += nt * 2 // 4
        a(f"""
        s_waitcnt vmcnt({32 - tot + 16})
        s_mov_b64 exec, 1
        ds_add_u32 v3, v2 offset:{4*s}
        s_mov_b64 exec, -1
        """)
    a(f"""
    s_mov_b32 s50, 0
    K2_GLOOP:
    s_add_u32 s45, s45, 4096
    s_add_u32 s46, s46, 4096
    s_add_u32 s48, s48, 4096
    s_add_u32 s49, s49, 4096
    """)
    for s in range(4):
        a("s_waitcnt vmcnt(12)")
        a(gmfma(s))
        a(gload(s, s*1024))
    a(f"""
    s_add_u32 s50, s50, 1
    s_cmp_lt_u32 s50, 6
    s_cbranch_scc1 K2_GLOOP
    """)
    for s in range(4):
        a(f"s_waitcnt vmcnt({12 - 4*s})")
        a(gmfma(s))
    a(f"""
    s_lshl_b32 s47, s36, 8
    s_add_u32 s47, s47, {GF}
    v_and_b32 v4, 31, v0
    v_lshlrev_b32 v4, 2, v4
    buffer_load_dword v5, v4, s[16:19], s47 offen
    buffer_load_dword v6, v4, s[16:19], s47 offen offset:128
    v_add_u32 v2, {K2_RED}, v1
    s_cmp_eq_u32 s37, 3
    s_cbranch_scc1 K2_GWR
    s_lshl_b32 s47, s37, 2
    s_add_u32 s47, s47, {K2_FLG + 20}
    v_mov_b32 v3, s47
    K2_GPOLL:
    ds_read_b32 v4, v3
    s_waitcnt lgkmcnt(0)
    v_readfirstlane_b32 s47, v4
    s_cmp_lg_u32 s47, 0
    s_cbranch_scc1 K2_GRD
    s_sleep 2
    s_branch K2_GPOLL
    K2_GRD:
    """)
    for i in range(16):
        a(f"ds_read_b128 {vr(GB+4*i,4)}, v2 offset:{i*1024}")
    for i in range(16):
        a(f"s_waitcnt lgkmcnt({15-i})")
        for r in range(4): a(f"v_add_f32 v{GA+4*i+r}, v{GA+4*i+r}, v{GB+4*i+r}")
    a(f"""
    s_cmp_eq_u32 s37, 0
    s_cbranch_scc1 K2_GFIN
    K2_GWR:
    s_nop 7
    s_nop 3
    """)
    for i in range(16):
        a(f"ds_write_b128 v2, {vr(GA+4*i,4)} offset:{i*1024}")
    a(f"""
    s_lshl_b32 s47, s37, 2
    s_add_u32 s47, s47, {K2_FLG + 16}
    v_mov_b32 v3, s47
    v_mov_b32 v4, 1
    s_waitcnt lgkmcnt(0)
    ds_write_b32 v3, v4
    s_endpgm
    K2_GFIN:
    s_waitcnt vmcnt(0)
    v_sub_f32 v5, 1.0, v5
    v_sub_f32 v6, 1.0, v6
    s_lshl_b32 s45, s36, 1
    s_lshl_b32 s45, s45, 4
    s_lshl_b32 s47, s38, 1
    s_add_u32 s45, s45, s47
    s_lshl_b32 s45, s45, 11
    s_add_u32 s45, s45, {BF}
    s_add_u32 s46, s45, {16*2048}           ; tb=1
    """)
    for cb in range(2):
        for tb in range(2):
            A0 = GA + (cb*2+tb)*16
            d = GB + (cb*2+tb)*8
            for r in range(16): a(f"v_mul_f32 v{A0+r}, v{5+tb}, v{A0+r}")
            for r in range(8): a(f"v_cvt_pk_bf16_f32 v{d+r}, v{A0+2*r}, v{A0+2*r+1}")
            a(f"buffer_store_dwordx4 {vr(d,4)}, v1, s[16:19], s{45+tb} offen offset:{cb*2048}")
            a(f"buffer_store_dwordx4 {vr(d+4,4)}, v1, s[16:19], s{45+tb} offen offset:{cb*2048+1024}")
    a("s_endpgm")

    Q = 4; KB = [8, 12]; VB = [16, 24]; P = 32; S = [40, 56]; O = 72; C = 88
    a(f"""
    K2_ATT:
    s_sub_u32 s39, s37, 4                   ; a
    s_lshl_b32 s40, s35, 3
    s_add_u32 s40, s40, s39                 ; qb = b*8 + a
    s_lshl_b32 s41, s34, 6
    s_add_u32 s41, s41, s40
    s_lshl_b32 s41, s41, 10
    buffer_load_dwordx4 {vr(Q,4)}, v1, s[16:19], s41 offen
    s_mov_b32 s52, 0x0000ffff
    s_mov_b32 s53, 0x0000ffff
    s_mov_b32 s47, 0x3f803f80
    """)
    for r in range(16, 32): a(f"v_mov_b32 v{r}, s47")
    a(f"""
    s_mov_b32 s54, 0
    s_barrier
    v_mov_b32 v3, {K2_FLG}
    K2_AP0:
    ds_read_b32 v2, v3
    s_waitcnt lgkmcnt(0)
    v_readfirstlane_b32 s47, v2
    s_cmp_eq_u32 s47, 4
    s_cbranch_scc1 K2_AP0D
    s_sleep 1
    s_branch K2_AP0
    K2_AP0D:
    ds_read_b128 {vr(KB[0],4)}, v1
    s_waitcnt vmcnt(0) lgkmcnt(0)
    v_mfma_f32_32x32x16_bf16 {vr(S[0],16)}, {vr(KB[0],4)}, {vr(Q,4)}, 0
    s_nop 7
    s_nop 3
    v_max3_f32 v2, v{S[0]}, v{S[0]+1}, v{S[0]+2}
    """)
    for i in range(3, 15, 2): a(f"v_max3_f32 v2, v2, v{S[0]+i}, v{S[0]+i+1}")
    a(f"""
    v_max_f32 v2, v2, v{S[0]+15}
    v_mov_b32 v3, v2
    s_nop 1
    v_permlane32_swap_b32 v2, v3
    s_nop 1
    v_max_f32 v2, v2, v3
    K2_ARUN:
    v_sub_f32 v2, 0, v2
    """)
    for r in range(16): a(f"v_mov_b32 v{C+r}, v2")
    for r in range(16): a(f"v_mov_b32 v{O+r}, 0")
    for r in range(4): a(f"v_mov_b32 v{P+4+r}, 0")
    def vread(buf, off):
        return f"""
        s_mov_b64 exec, s[52:53]
        ds_read_b128 {vr(VB[buf],4)}, v2 offset:{off+1024}
        ds_read_b128 {vr(VB[buf]+4,4)}, v2 offset:{off+1024+256}
        s_mov_b64 exec, -1
        """
    def kread(buf, off): return f"ds_read_b128 {vr(KB[buf],4)}, v2 offset:{off}"
    a(f"""
    v_mov_b32 v2, v1
    {kread(0, 0)}
    {vread(0, 0)}
    {kread(1, 2048)}
    s_waitcnt lgkmcnt(3)
    v_mfma_f32_32x32x16_bf16 {vr(S[0],16)}, {vr(KB[0],4)}, {vr(Q,4)}, {vr(C,16)}
    s_mov_b32 s55, 0
    s_mov_b32 s56, 1
    s_mov_b32 s57, {K2_FLG+4}
    s_cmp_eq_u32 s54, 0
    s_cselect_b32 s56, s56, 1000
    s_nop 7
    K2_ALOOP:
    s_cmp_eq_u32 s55, s56
    s_cbranch_scc1 K2_APOLL
    K2_ALOOP2:
    """)
    def step(p):
        sa, sb = S[p], S[1-p]
        e = lambda i: f"v_exp_f32 v{sa+i}, v{sa+i}"
        c = lambda i: f"v_cvt_pk_bf16_f32 v{P+i}, v{sa+2*i}, v{sa+2*i+1}"
        L = []
        L += [e(0), e(1), e(2), e(3)]
        L.append(f"v_mfma_f32_32x32x16_bf16 {vr(O,16)}, {vr(VB[1-p]+4,4)}, {vr(P+4,4)}, {vr(O,16)}")
        L.append(vread(1-p, (p+1)*2048))
        L += [e(4), e(5), e(6), e(7), c(0), c(1)]
        L.append("s_waitcnt lgkmcnt(2)")
        L.append(f"v_mfma_f32_32x32x16_bf16 {vr(sb,16)}, {vr(KB[1-p],4)}, {vr(Q,4)}, {vr(C,16)}")
        L.append(kread(p, (p+2)*2048))
        L += [e(8), c(2), c(3), e(9), e(10), e(11), e(12)]
        L.append(f"v_mfma_f32_32x32x16_bf16 {vr(O,16)}, {vr(VB[p],4)}, {vr(P,4)}, {vr(O,16)}")
        L += [e(13), e(14), e(15), c(4), c(5), c(6), c(7)]
        return "\n".join(L)
    a(step(0))
    a(step(1))
    a(f"""
    v_add_u32 v2, 4096, v2
    s_add_u32 s55, s55, 1
    s_cmp_lt_u32 s55, 32
    s_cbranch_scc1 K2_ALOOP
    s_nop 0
    v_mfma_f32_32x32x16_bf16 {vr(O,16)}, {vr(VB[1]+4,4)}, {vr(P+4,4)}, {vr(O,16)}
    s_waitcnt lgkmcnt(0)
    s_nop 7
    s_nop 3
    v_add_f32 v2, |v{O}|, |v{O+1}|
    v_add_f32 v3, |v{O+2}|, |v{O+3}|
    v_add_f32 v2, v2, |v{O+4}|
    v_add_f32 v3, v3, |v{O+5}|
    v_add_f32 v2, v2, |v{O+6}|
    v_add_f32 v3, v3, |v{O+7}|
    v_add_f32 v2, v2, v{O+8}
    v_add_f32 v2, v2, v3
    v_rcp_f32 v3, v{O+8}
    s_mov_b32 s47, 0x7b800000               ; 2^120
    v_cmp_nlt_f32 vcc, v2, s47
    s_cmp_lg_u32 s54, 0
    s_cbranch_scc1 K2_AFIN
    s_cbranch_vccnz K2_ASLOW
    K2_AFIN:
    """)
    for r in range(8): a(f"v_mul_f32 v{O+r}, v3, v{O+r}")
    for r in range(4): a(f"v_cvt_pk_bf16_f32 v{P+r}, v{O+2*r}, v{O+2*r+1}")
    a(f"""
    s_lshl_b32 s41, s40, 5
    s_add_u32 s41, s41, s34
    s_lshl_b32 s41, s41, 10
    s_add_u32 s41, s41, {OF}
    buffer_store_dwordx4 {vr(P,4)}, v1, s[16:19], s41 offen
    s_endpgm
    K2_APOLL:
    v_mov_b32 v3, s57
    K2_APOLL1:
    ds_read_b32 v104, v3
    s_waitcnt lgkmcnt(0)
    v_readfirstlane_b32 s47, v104
    s_cmp_eq_u32 s47, 4
    s_cbranch_scc1 K2_APOLL2
    s_sleep 1
    s_branch K2_APOLL1
    K2_APOLL2:
    s_add_u32 s57, s57, 4
    s_cmp_eq_u32 s56, 1
    s_cselect_b32 s47, {(STAGES[0]+STAGES[1])//2 - 1}, 1000
    s_cmp_eq_u32 s56, {(STAGES[0]+STAGES[1])//2 - 1}
    s_cselect_b32 s56, {(STAGES[0]+STAGES[1]+STAGES[2])//2 - 1}, s47
    s_branch K2_ALOOP2
    K2_ASLOW:
    s_mov_b32 s54, 1
    v_mov_b32 v2, v1
    s_mov_b32 s47, 0xff800000
    v_mov_b32 v104, s47
    s_mov_b32 s47, 0x3f803f80
    """)
    for r in range(16, 32): a(f"v_mov_b32 v{r}, s47")
    a(f"""
    s_mov_b32 s55, 0
    K2_ASL:
    ds_read_b128 {vr(KB[0],4)}, v2
    s_waitcnt lgkmcnt(0)
    v_mfma_f32_32x32x16_bf16 {vr(S[0],16)}, {vr(KB[0],4)}, {vr(Q,4)}, 0
    v_add_u32 v2, 2048, v2
    s_nop 7
    s_nop 3
    """)
    for i in range(0, 16, 2): a(f"v_max3_f32 v104, v104, v{S[0]+i}, v{S[0]+i+1}")
    a(f"""
    s_add_u32 s55, s55, 1
    s_cmp_lt_u32 s55, 64
    s_cbranch_scc1 K2_ASL
    v_mov_b32 v2, v104
    v_mov_b32 v3, v104
    s_nop 1
    v_permlane32_swap_b32 v2, v3
    s_nop 1
    v_max_f32 v2, v2, v3
    s_branch K2_ARUN
    K2_END:
    s_endpgm
    """)
    return khead("gm_k2_kernel") + a.text() + kdesc("gm_k2_kernel", 136, 80)

K3_LDS = 65536
def gen_k3():
    a = Asm()
    a(f"""
    s_cmp_ge_u32 s2, 256
    s_cbranch_scc1 K3_END
    s_load_dwordx2 s[60:61], s[0:1], 56     ; out
    s_load_dwordx2 s[62:63], s[0:1], 72     ; ws
    v_lshrrev_b32 v1, 6, v0
    v_and_b32 v0, 63, v0
    s_and_b32 s32, s2, 7
    v_readfirstlane_b32 s37, v1
    s_lshr_b32 s33, s2, 3
    s_lshr_b32 s47, s33, 3
    s_and_b32 s35, s33, 7
    s_lshr_b32 s36, s32, 1
    s_lshl_b32 s36, s36, 3
    s_add_u32 s36, s36, s35                 ; tokb64
    s_and_b32 s38, s32, 1
    s_lshl_b32 s38, s38, 2
    s_add_u32 s38, s38, s47                 ; colt
    v_lshlrev_b32 v1, 4, v0
    s_lshl_b32 s39, s37, 13                 ; w*8 ksteps*1024
    s_lshl_b32 s45, s36, 16
    s_add_u32 s45, s45, s39
    s_add_u32 s45, s45, {OF}                ; O tb0
    s_add_u32 s46, s45, 32768               ; O tb1
    s_lshl_b32 s48, s38, 16
    s_add_u32 s48, s48, s39
    s_add_u32 s48, s48, {WOF}
    s_add_u32 s49, s48, 32768
    s_add_u32 s50, s45, 4096
    s_add_u32 s51, s46, 4096
    s_add_u32 s52, s48, 4096
    s_add_u32 s53, s49, 4096
    s_waitcnt lgkmcnt(0)
    """)
    srd(a, 16, 62, WS_BYTES)
    srd(a, 20, 60, 2048*512*2)
    GA = 16; GB = 80
    for ks in range(8):
        b = GB + ks*16
        o = (ks & 3) * 1024
        hi = ks >> 2
        a(f"""
        buffer_load_dwordx4 {vr(b,4)}, v1, s[16:19], s{52 if hi else 48} offen offset:{o}
        buffer_load_dwordx4 {vr(b+4,4)}, v1, s[16:19], s{50 if hi else 45} offen offset:{o}
        buffer_load_dwordx4 {vr(b+8,4)}, v1, s[16:19], s{51 if hi else 46} offen offset:{o}
        buffer_load_dwordx4 {vr(b+12,4)}, v1, s[16:19], s{53 if hi else 49} offen offset:{o}
        """)
    a(f"""
    s_lshr_b32 s40, s37, 1                  ; cb
    s_and_b32 s41, s37, 1                   ; tb
    s_lshl_b32 s42, s36, 1
    s_add_u32 s42, s42, s41                 ; tokblk32
    s_lshl_b32 s43, s38, 1
    s_add_u32 s43, s43, s40                 ; colblk32
    s_lshl_b32 s44, s42, 4
    s_add_u32 s44, s44, s43
    s_lshl_b32 s44, s44, 11
    s_add_u32 s44, s44, {BF}
    buffer_load_dwordx4 v[4:7], v1, s[16:19], s44 offen
    buffer_load_dwordx4 v[8:11], v1, s[16:19], s44 offen offset:1024
    s_lshl_b32 s44, s42, 7
    s_add_u32 s44, s44, {GF}
    v_and_b32 v2, 31, v0
    v_lshlrev_b32 v3, 2, v2
    buffer_load_dword v12, v3, s[16:19], s44 offen
    v_lshlrev_b32 v2, 10, v2
    v_lshrrev_b32 v3, 5, v0
    v_lshlrev_b32 v3, 4, v3
    v_add_u32 v13, v2, v3
    s_lshl_b32 s44, s42, 15
    s_lshl_b32 s47, s43, 6
    s_add_u32 s44, s44, s47
    """)
    for ks in range(8):
        b = GB + ks*16
        w0, h0, h1, w1 = vr(b,4), vr(b+4,4), vr(b+8,4), vr(b+12,4)
        a(f"s_waitcnt vmcnt({3 + 28 - 4*ks})")
        for cb, w_ in ((0, w0), (1, w1)):
            for tb, h_ in ((0, h0), (1, h1)):
                acc = vr(GA + (cb*2+tb)*16, 16)
                c = "0" if ks == 0 else acc
                a(f"v_mfma_f32_32x32x16_bf16 {acc}, {w_}, {h_}, {c}")
    a(f"""
    s_lshl_b32 s47, s37, 12
    v_add_u32 v2, s47, v1
    s_lshl_b32 s47, s37, 14
    v_add_u32 v3, s47, v1
    s_nop 7
    s_nop 3
    """)
    for q in range(4):
        for i in range(4):
            a(f"ds_write_b128 v2, {vr(GA+q*16+4*i,4)} offset:{q*16384 + i*1024}")
    a("s_waitcnt lgkmcnt(0)\ns_barrier")
    for s in range(4):
        for i in range(4):
            a(f"ds_read_b128 {vr(GA+s*16+4*i,4)}, v3 offset:{s*4096 + i*1024}")
    a("s_waitcnt vmcnt(0)")
    for r in range(8):
        a(f"v_lshlrev_b32 v{GB+2*r}, 16, v{4+r}")
        a(f"v_and_b32 v{GB+2*r+1}, 0xffff0000, v{4+r}")
    a("s_waitcnt lgkmcnt(8)")
    for r in range(16): a(f"v_add_f32 v{GA+r}, v{GA+r}, v{GA+16+r}")
    a("s_waitcnt lgkmcnt(0)")
    for r in range(16): a(f"v_add_f32 v{GA+32+r}, v{GA+32+r}, v{GA+48+r}")
    for r in range(16): a(f"v_add_f32 v{GA+r}, v{GA+r}, v{GA+32+r}")
    for r in range(16): a(f"v_fma_f32 v{GA+r}, v{GA+r}, v12, v{GB+r}")
    for r in range(8): a(f"v_cvt_pk_bf16_f32 v{4+r}, v{GA+2*r}, v{GA+2*r+1}")
    a(f"""
    buffer_store_dwordx4 v[4:7], v13, s[20:23], s44 offen
    buffer_store_dwordx4 v[8:11], v13, s[20:23], s44 offen offset:32
    K3_END:
    s_endpgm
    """)
    return khead("gm_k3_kernel") + a.text() + kdesc("gm_k3_kernel", 208, 80)

def kernels():
    return [("gm_k2_kernel", 256, 768, K2_LDS, gen_k2), ("gm_k3_kernel", 256, 256, K3_LDS, gen_k3)]
```

```python
import sys

NAME = "gated_mix__mha_block__dense_activation_relu__prompt"

QF  = 0x000000
KVF = 0x200000
HF  = 0x600000
W2F = 0xD00000
WOF = 0xF00000
GF  = 0xF80000
OF  = 0x1000000
BF  = 0x1200000
WS_BYTES = 0x1400000

QSCALE = 0.25 * 1.4426950408889634

import struct
def f32hex(x): return "0x%08x" % struct.unpack("<I", struct.pack("<f", x))[0]

class Asm:
    def __init__(self): self.L = []
    def __call__(self, s):
        for line in s.strip("\n").split("\n"):
            line = line.strip()
            if not line: continue
            if line.endswith(":") or line.startswith("."): self.L.append(line)
            else: self.L.append("    " + line)
    def text(self): return "\n".join(self.L) + "\n"

def vr(b, n): return f"v[{b}:{b+n-1}]"

def srd(a, sd, sp, nbytes):
    a(f"""
    s_mov_b32 s{sd}, s{sp}
    s_and_b32 s{sd+1}, s{sp+1}, 0xffff
    s_mov_b32 s{sd+2}, {hex(nbytes)}
    s_mov_b32 s{sd+3}, 0x00020000
    """)

def kdesc(name, vgpr, sgpr):
    acc = (vgpr + 3) // 4 * 4
    return f""".section .rodata,"a"
.p2align 6
.amdhsa_kernel {name}
  .amdhsa_next_free_vgpr {vgpr}
  .amdhsa_next_free_sgpr {sgpr}
  .amdhsa_accum_offset {acc}
  .amdhsa_group_segment_fixed_size 0
  .amdhsa_kernarg_size 80
  .amdhsa_user_sgpr_count 2
  .amdhsa_user_sgpr_kernarg_segment_ptr 1
  .amdhsa_system_sgpr_workgroup_id_x 1
.end_amdhsa_kernel
.text
"""

def khead(name):
    return f""".globl {name}
.p2align 8
.type {name},@function
{name}:
"""

K1_STAGE = 45056
K1_XOFF = 28672
K1_LDS = 3 * K1_STAGE

def gen_k1():
    a = Asm()
    a(f"""
    s_cmp_ge_u32 s2, 256
    s_cbranch_scc1 K1_END
    s_load_dwordx4 s[48:51], s[0:1], 0      ; x, wqkv
    s_load_dwordx2 s[52:53], s[0:1], 16     ; wo
    s_load_dwordx4 s[56:59], s[0:1], 32     ; w1, w2
    s_load_dwordx2 s[60:61], s[0:1], 48     ; gate
    s_load_dwordx2 s[62:63], s[0:1], 72     ; ws
    v_lshrrev_b32 v1, 6, v0
    v_and_b32 v0, 63, v0                    ; lane
    s_and_b32 s32, s2, 7                    ; xcd
    v_readfirstlane_b32 s37, v1             ; wave
    s_lshr_b32 s33, s2, 3                   ; j
    s_and_b32 s34, s32, 1
    s_lshl_b32 s34, s34, 3
    s_and_b32 s47, s33, 7
    s_add_u32 s34, s34, s47                 ; tb
    s_lshr_b32 s47, s33, 3                  ; c4
    s_and_b32 s36, s47, 1                   ; type
    s_lshr_b32 s47, s47, 1
    s_lshr_b32 s35, s32, 1
    s_lshl_b32 s35, s35, 1
    s_add_u32 s35, s35, s47                 ; ct
    s_lshr_b32 s38, s37, 1                  ; th
    s_and_b32 s39, s37, 1                   ; ch
    s_lshl_b32 s40, s37, 10                 ; w*1024
    s_mov_b32 s44, 32768
    s_mov_b32 s45, 65536
    s_mov_b32 s46, 98304
    s_waitcnt lgkmcnt(0)
    """)
    srd(a, 8, 48, 2048*512*2)
    srd(a, 16, 62, WS_BYTES)
    srd(a, 20, 60, 1024)
    srd(a, 24, 58, 1792*512*2)
    srd(a, 28, 52, 512*512*2)
    XF = [24, 40]; WFr = [56, 84]; ACC = 112
    a(f"""
    s_lshl_b32 s47, s36, 3
    s_add_u32 s47, s47, s35
    s_lshl_b32 s47, s47, 3
    s_lshl_b32 s64, s34, 7
    s_add_u32 s47, s47, s64
    s_lshl_b32 s64, s37, 1
    s_add_u32 s47, s47, s64
    s_lshl_b32 s65, s47, 2
    s_lshl_b32 s47, s47, 10                 ; *1024 bytes
    v_lshrrev_b32 v1, 5, v0
    v_lshlrev_b32 v1, 10, v1
    v_and_b32 v2, 31, v0
    v_lshlrev_b32 v2, 5, v2
    v_add_u32 v1, v1, v2
    buffer_load_dwordx4 v[24:27], v1, s[8:11], s47 offen
    buffer_load_dwordx4 v[28:31], v1, s[8:11], s47 offen offset:16
    buffer_load_dwordx4 v[32:35], v2, s[20:23], 0 offen
    buffer_load_dwordx4 v[36:39], v2, s[20:23], 0 offen offset:16
    v_lshrrev_b32 v1, 4, v0                 ; l>>4
    s_and_b32 s47, s37, 1
    s_lshl_b32 s47, s47, 2
    v_add_u32 v1, s47, v1                   ; f = 4*(w&1) + (l>>4)
    v_and_b32 v2, 7, v0
    v_xor_b32 v1, v1, v2                    ; chunk
    v_lshlrev_b32 v1, 4, v1
    v_lshrrev_b32 v2, 3, v0
    s_lshl_b32 s47, s34, 7
    s_lshl_b32 s64, s37, 3
    s_add_u32 s47, s47, s64                 ; tb*128 + 8w
    v_add_u32 v2, s47, v2
    v_lshlrev_b32 v2, 10, v2
    v_add_u32 v10, v1, v2
    v_lshrrev_b32 v1, 5, v0
    v_lshlrev_b32 v1, 1, v1
    v_and_b32 v2, 3, v0
    v_xor_b32 v3, v1, v2                    ; chunk_l
    v_and_b32 v4, 1, v3
    v_lshlrev_b32 v4, 1, v4
    v_lshrrev_b32 v5, 1, v3
    v_or_b32 v4, v4, v5
    v_lshlrev_b32 v3, 4, v3
    v_lshlrev_b32 v4, 4, v4
    v_lshrrev_b32 v5, 2, v0
    s_lshl_b32 s47, s37, 4
    v_add_u32 v5, s47, v5                   ; 16w + (l>>2)
    v_and_b32 v6, 15, v0                    ; i
    v_lshrrev_b32 v7, 4, v0                 ; g
    v_lshrrev_b32 v8, 1, v6
    v_xor_b32 v8, v8, v7                    ; g ^ (i>>1)
    v_lshlrev_b32 v8, 4, v8
    s_lshl_b32 s47, s38, 6
    v_add_u32 v9, s47, v6
    v_lshlrev_b32 v9, 7, v9
    v_add_u32 v9, v9, v8
    v_add_u32 v13, {K1_XOFF}, v9
    v_xor_b32 v14, 64, v13
    v_lshlrev_b32 v8, 3, v7                 ; 8g
    v_bfe_u32 v9, v0, 2, 2                  ; r
    v_add_u32 v8, v8, v9
    v_lshlrev_b32 v8, 6, v8
    v_and_b32 v9, 1, v7
    v_lshlrev_b32 v9, 5, v9
    v_add_u32 v8, v8, v9
    v_and_b32 v9, 3, v0
    v_lshlrev_b32 v9, 3, v9
    v_add_u32 v8, v8, v9                    ; wa[0]
    v_xor_b32 v9, 32, v8                    ; wa[1]
    s_cmp_eq_u32 s36, 1
    s_cbranch_scc1 K1_FFN
    """)

    def dma_chunk(NP, qkv):
        L = []
        L.append("s_add_u32 s47, s43, s40")
        for p in range(NP):
            if qkv:
                kind, chh = p % 3, p // 3
                io = kind * 1024 + chh * 64
                vo = "v12" if kind < 2 else "v11"
            else:
                io = p * 64; vo = "v11"
            L.append(f"s_add_u32 m0, s47, {p*4096 - io}")
            L.append("s_nop 0")
            L.append(f"buffer_load_dwordx4 {vo}, s[12:15], 0 offen offset:{io} lds")
        for i in range(4):
            so = "0" if i == 0 else f"s{43+i}"
            L.append(f"s_add_u32 m0, s47, {K1_XOFF + i*4096}")
            L.append("s_nop 0")
            L.append(f"buffer_load_dwordx4 v10, s[8:11], {so} offen lds")
        RS = 3072 if qkv else 3584
        L.append("v_add_u32 v10, 128, v10")
        L.append(f"v_add_u32 v11, {64*RS}, v11")
        if qkv: L.append(f"v_add_u32 v12, {64*RS}, v12")
        L.append(f"s_add_u32 s43, s43, {K1_STAGE}")
        L.append(f"s_cmp_eq_u32 s43, {3*K1_STAGE}")
        L.append("s_cselect_b32 s43, 0, s43")
        return "\n".join(L)

    def reads(ks, NB, st):
        xs = [f"ds_read_b128 {vr(XF[st]+4*tf,4)}, v{18+ks} offset:{tf*2048}" for tf in range(4)]
        ws = []
        for b in range(NB):
            if b < 6: areg, off = 20 + (b & 1), (b >> 1) * 4096
            else: areg, off = 22, 0
            for h in range(2):
                ws.append(f"ds_read_b64_tr_b16 {vr(WFr[st]+4*b+2*h,2)}, v{areg} offset:{off + ks*2048 + h*256}")
        return [xs[0]] + ws[0:2] + xs[1:] + ws[2:]

    def mfmas(NB, st, qkv):
        L = []
        for b in range(NB):
            for tf in range(4):
                acc = vr(ACC + (b*4+tf)*4, 4)
                w_, x_ = vr(WFr[st]+4*b, 4), vr(XF[st]+4*tf, 4)
                if qkv and b >= 4: L.append(f"v_mfma_f32_16x16x32_bf16 {acc}, {x_}, {w_}, {acc}")
                else: L.append(f"v_mfma_f32_16x16x32_bf16 {acc}, {w_}, {x_}, {acc}")
        return L

    def gate_compute():
        return f"""
        v_dot2_f32_bf16 v23, v24, v32, 0
        v_dot2_f32_bf16 v1, v25, v33, 0
        v_dot2_f32_bf16 v23, v26, v34, v23
        v_dot2_f32_bf16 v1, v27, v35, v1
        v_dot2_f32_bf16 v23, v28, v36, v23
        v_dot2_f32_bf16 v1, v29, v37, v1
        v_dot2_f32_bf16 v23, v30, v38, v23
        v_dot2_f32_bf16 v1, v31, v39, v1
        s_nop 3
        v_add_f32 v23, v23, v1
        s_nop 1
        v_add_f32_dpp v23, v23, v23 quad_perm:[1,0,3,2] row_mask:0xf bank_mask:0xf
        s_nop 1
        v_add_f32_dpp v23, v23, v23 quad_perm:[2,3,0,1] row_mask:0xf bank_mask:0xf
        s_nop 1
        v_add_f32_dpp v23, v23, v23 row_half_mirror row_mask:0xf bank_mask:0xf
        s_nop 1
        v_add_f32_dpp v23, v23, v23 row_mirror row_mask:0xf bank_mask:0xf
        s_nop 1
        ds_swizzle_b32 v1, v23 offset:0x401F
        s_waitcnt lgkmcnt(0)
        v_add_f32 v23, v23, v1
        v_mul_f32 v23, {f32hex(-1.4426950408889634)}, v23
        v_exp_f32 v23, v23
        s_nop 0
        v_add_f32 v23, 1.0, v23
        v_rcp_f32 v23, v23
        """

    def body(qkv):
        T = "Q" if qkv else "F"
        NB = 6 if qkv else 7
        NP = NB
        n = NP + 4
        RS = 3072 if qkv else 3584
        if qkv:
            srd(a, 12, 50, 512*1536*2)
            a(f"""
            s_mul_i32 s47, s35, 128
            s_mov_b32 s64, {RS}
            v_mul_lo_u32 v5, v5, s64
            v_add_u32 v5, s47, v5
            v_add_u32 v11, v5, v3
            v_add_u32 v12, v5, v4
            s_mul_i32 s47, s39, 12288
            v_add_u32 v15, s47, v8
            v_add_u32 v16, s47, v9
            v_mov_b32 v17, v8
            """)
        else:
            srd(a, 12, 56, 512*1792*2)
            a(f"""
            s_mul_i32 s47, s35, 448
            s_mov_b32 s64, {RS}
            v_mul_lo_u32 v5, v5, s64
            v_add_u32 v5, s47, v5
            v_add_u32 v11, v5, v3
            s_lshl_b32 s47, s39, 14
            v_add_u32 v15, s47, v8
            v_add_u32 v16, s47, v9
            s_lshl_b32 s47, s39, 5
            v_xor_b32 v17, s47, v8
            v_add_u32 v17, 12288, v17
            """)
        a("s_mov_b32 s43, 0")
        a(dma_chunk(NP, qkv))
        a(dma_chunk(NP, qkv))
        for r in range(ACC, ACC + NB*16): a(f"v_mov_b32 v{r}, 0")
        a(f"s_waitcnt vmcnt({2*n})")
        a(gate_compute())
        a(f"""
        s_mov_b32 s41, 0
        s_mov_b32 s42, 0
        K1_LOOP_{T}:
        v_add_u32 v18, s42, v13
        v_add_u32 v19, s42, v14
        v_add_u32 v20, s42, v15
        v_add_u32 v21, s42, v16
        v_add_u32 v22, s42, v17
        s_cmp_eq_u32 s41, 7
        s_cbranch_scc1 K1_W0_{T}
        s_waitcnt vmcnt({n})
        s_branch K1_W1_{T}
        K1_W0_{T}:
        s_waitcnt vmcnt({5 if qkv else 0})
        K1_W1_{T}:
        s_barrier
        """)
        r0 = reads(0, NB, 0)
        for x in r0: a(x)
        a(f"""
        s_cmp_ge_u32 s41, 6
        s_cbranch_scc1 K1_ND_{T}
        """)
        a(dma_chunk(NP, qkv))
        if qkv:
            a(f"""
            s_branch K1_ND2_{T}
            K1_ND_{T}:
            s_cmp_eq_u32 s41, 6
            s_cbranch_scc0 K1_ND2_{T}
            s_lshl_b32 s66, s34, 3
            s_add_u32 s66, s66, s35                 ; idx
            s_and_b32 s67, s66, 15                  ; cb
            s_lshr_b32 s66, s66, 4                  ; kq
            v_lshrrev_b32 v1, 2, v0
            v_lshlrev_b32 v1, 10, v1
            v_and_b32 v2, 3, v0
            v_lshlrev_b32 v2, 4, v2
            v_add_u32 v1, v1, v2
            s_lshl_b32 s47, s67, 6
            v_add_u32 v1, s47, v1
            s_mul_i32 s68, s66, 7
            s_add_u32 s69, s68, s37
            s_add_u32 s70, s37, 4
            s_min_u32 s70, s70, 6
            s_add_u32 s70, s68, s70                 ; grp B
            s_lshl_b32 s71, s66, 2
            s_add_u32 s71, s71, s37
            s_mul_i32 s72, s37, 5120
            s_add_u32 s72, s72, {2*K1_STAGE}
            s_lshl_b32 s47, s69, 15
            s_mov_b32 m0, s72
            s_add_u32 s64, s47, 16384
            buffer_load_dwordx4 v1, s[24:27], s47 offen lds
            s_add_u32 m0, s72, 1024
            s_lshl_b32 s47, s70, 15
            buffer_load_dwordx4 v1, s[24:27], s64 offen lds
            s_add_u32 m0, s72, 2048
            s_add_u32 s64, s47, 16384
            buffer_load_dwordx4 v1, s[24:27], s47 offen lds
            s_add_u32 m0, s72, 3072
            s_lshl_b32 s47, s71, 14
            buffer_load_dwordx4 v1, s[24:27], s64 offen lds
            s_add_u32 m0, s72, 4096
            s_nop 0
            buffer_load_dwordx4 v1, s[28:31], s47 offen lds
            K1_ND2_{T}:
            """)
        else:
            a(f"K1_ND_{T}:")
        nr = len(r0)
        r1 = reads(1, NB, 1)
        m0 = mfmas(NB, 0, qkv)
        def need(idx):
            b, tf = idx // 4, idx % 4
            if b == 0: return 3 + tf
            return 6 + 2 * b
        issued1 = 0
        done = 0
        for idx, m in enumerate(m0):
            nd = need(idx)
            if nd > done:
                outstanding_allowed = (nr - nd) + issued1
                a(f"s_waitcnt lgkmcnt({min(outstanding_allowed, 15)})")
                done = nd
            a(m)
            if idx >= 4 and issued1 < len(r1) and (nr - done) + issued1 < 14:
                a(r1[issued1]); issued1 += 1
        while issued1 < len(r1):
            a(r1[issued1]); issued1 += 1
        m1 = mfmas(NB, 1, qkv)
        done = 0
        for idx, m in enumerate(m1):
            nd = need(idx)
            if nd > done:
                a(f"s_waitcnt lgkmcnt({min(nr - nd, 15)})")
                done = nd
            a(m)
        a(f"""
        s_add_u32 s42, s42, {K1_STAGE}
        s_cmp_eq_u32 s42, {3*K1_STAGE}
        s_cselect_b32 s42, 0, s42
        s_add_u32 s41, s41, 1
        s_cmp_lt_u32 s41, 8
        s_cbranch_scc1 K1_LOOP_{T}
        """)
        A = lambda b, tf, r: ACC + (b*4+tf)*4 + r
        a(f"""
        v_and_b32 v6, 15, v0                    ; t
        v_lshrrev_b32 v7, 4, v0                 ; g'
        v_lshrrev_b32 v8, 5, v0                 ; g'>>1
        v_and_b32 v9, 1, v7                     ; g'&1
        v_lshlrev_b32 v9, 9, v9                 ; *512
        s_lshl_b32 s64, s34, 2
        s_lshl_b32 s47, s38, 1
        s_add_u32 s64, s64, s47
        """)
        tmp = 24
        if qkv:
            a(f"""
            s_lshl_b32 s47, s35, 2
            s_lshl_b32 s66, s39, 1
            s_add_u32 s66, s66, s47
            ; Q voffset v1 = (g'>>1)*65536 + (g'&1)*512 + t*16
            v_lshlrev_b32 v1, 16, v8
            v_add_u32 v1, v1, v9
            v_lshlrev_b32 v2, 4, v6
            v_add_u32 v1, v1, v2
            ; K voffset v2 = (g'>>1)*131072 + (g'&1)*512 + ((t>>3)*16+(t&7))*16
            v_lshlrev_b32 v2, 17, v8
            v_add_u32 v2, v2, v9
            v_lshrrev_b32 v3, 3, v6
            v_lshlrev_b32 v3, 8, v3
            v_add_u32 v2, v2, v3
            v_and_b32 v3, 7, v6
            v_lshlrev_b32 v3, 4, v3
            v_add_u32 v2, v2, v3
            ; V voffset v3 = ((g'&1)*2 + (g'>>1))*256 + d*16
            v_lshlrev_b32 v3, 8, v8
            v_add_u32 v3, v3, v9
            v_lshlrev_b32 v4, 4, v6
            v_add_u32 v3, v3, v4
            s_lshl_b32 s67, s66, 16
            s_lshl_b32 s47, s64, 10
            s_add_u32 s67, s67, s47
            s_lshl_b32 s68, s67, 1
            s_add_u32 s68, s68, {KVF}
            s_add_u32 s69, s68, 131072
            s_mov_b32 s70, {f32hex(QSCALE)}
            s_nop 4
            """)
            for tf in range(4):
                d = tmp + (tf % 4) * 4
                for r in range(4):
                    a(f"v_mul_f32 v{A(0,tf,r)}, s70, v{A(0,tf,r)}")
                    a(f"v_mul_f32 v{A(1,tf,r)}, s70, v{A(1,tf,r)}")
                a(f"""
                v_cvt_pk_bf16_f32 v{d}, v{A(0,tf,0)}, v{A(0,tf,1)}
                v_cvt_pk_bf16_f32 v{d+1}, v{A(0,tf,2)}, v{A(0,tf,3)}
                v_cvt_pk_bf16_f32 v{d+2}, v{A(1,tf,0)}, v{A(1,tf,1)}
                v_cvt_pk_bf16_f32 v{d+3}, v{A(1,tf,2)}, v{A(1,tf,3)}
                buffer_store_dwordx4 {vr(d,4)}, v1, s[16:19], s67 offen offset:{(tf&1)*256 + (tf>>1)*1024}
                """)
            for tf in range(4):
                d = tmp + 16 + tf * 4
                a(f"""
                v_cvt_pk_bf16_f32 v{d}, v{A(2,tf,0)}, v{A(2,tf,1)}
                v_cvt_pk_bf16_f32 v{d+1}, v{A(2,tf,2)}, v{A(2,tf,3)}
                v_cvt_pk_bf16_f32 v{d+2}, v{A(3,tf,0)}, v{A(3,tf,1)}
                v_cvt_pk_bf16_f32 v{d+3}, v{A(3,tf,2)}, v{A(3,tf,3)}
                buffer_store_dwordx4 {vr(d,4)}, v2, s[16:19], s68 offen offset:{(tf&1)*128 + (tf>>1)*2048}
                """)
            for hh in range(2):
                for p in range(2):
                    d = tmp + 32 + (hh*2+p) * 4
                    a(f"""
                    v_cvt_pk_bf16_f32 v{d}, v{A(4+hh,2*p,0)}, v{A(4+hh,2*p,1)}
                    v_cvt_pk_bf16_f32 v{d+1}, v{A(4+hh,2*p,2)}, v{A(4+hh,2*p,3)}
                    v_cvt_pk_bf16_f32 v{d+2}, v{A(4+hh,2*p+1,0)}, v{A(4+hh,2*p+1,1)}
                    v_cvt_pk_bf16_f32 v{d+3}, v{A(4+hh,2*p+1,2)}, v{A(4+hh,2*p+1,3)}
                    buffer_store_dwordx4 {vr(d,4)}, v3, s[16:19], s{68+hh} offen offset:{1024 + p*2048}
                    """)
            a(f"""
            s_lshl_b32 s66, s34, 3
            s_add_u32 s66, s66, s35                 ; idx
            s_and_b32 s67, s66, 15                  ; cb
            s_lshr_b32 s66, s66, 4                  ; kq
            s_mul_i32 s68, s66, 7
            s_add_u32 s69, s68, s37                 ; grp A
            s_add_u32 s70, s37, 4
            s_min_u32 s70, s70, 6
            s_add_u32 s70, s68, s70                 ; grp B
            s_lshl_b32 s71, s66, 2
            s_add_u32 s71, s71, s37
            v_lshrrev_b32 v1, 5, v0                 ; half
            v_lshlrev_b32 v1, 2, v1
            v_bfe_u32 v2, v0, 2, 2
            v_add_u32 v1, v1, v2
            v_lshlrev_b32 v1, 6, v1
            v_bfe_u32 v2, v0, 4, 1
            v_lshlrev_b32 v2, 5, v2
            v_add_u32 v1, v1, v2
            v_and_b32 v2, 1, v0
            v_lshlrev_b32 v2, 4, v2
            v_add_u32 v1, v1, v2
            v_bfe_u32 v2, v0, 1, 1
            v_lshlrev_b32 v2, 3, v2
            v_add_u32 v1, v1, v2
            v_add_u32 v1, s72, v1
            v_lshlrev_b32 v2, 4, v0
            s_waitcnt vmcnt(12)
            """)
            R = 112
            for gi in range(2):
                for e in range(2):
                    d = R + (gi*2+e)*4
                    a(f"ds_read_b64_tr_b16 {vr(d,2)}, v1 offset:{gi*2048 + e*512}")
                    a(f"ds_read_b64_tr_b16 {vr(d+2,2)}, v1 offset:{gi*2048 + e*512 + 1024}")
            a(f"ds_read_b64_tr_b16 {vr(R+16,2)}, v1 offset:4096")
            a(f"ds_read_b64_tr_b16 {vr(R+18,2)}, v1 offset:4608")
            a(f"""
            s_mul_i32 s47, s67, 112
            s_lshl_b32 s64, s69, 1
            s_add_u32 s64, s64, s47
            s_lshl_b32 s64, s64, 10
            s_add_u32 s64, s64, {W2F}
            s_lshl_b32 s68, s70, 1
            s_add_u32 s68, s68, s47
            s_lshl_b32 s68, s68, 10
            s_add_u32 s68, s68, {W2F}
            s_lshl_b32 s47, s67, 5
            s_add_u32 s47, s47, s71
            s_lshl_b32 s47, s47, 10
            s_add_u32 s47, s47, {WOF}
            s_waitcnt lgkmcnt(0)
            buffer_store_dwordx4 {vr(R,4)}, v2, s[16:19], s64 offen
            buffer_store_dwordx4 {vr(R+4,4)}, v2, s[16:19], s64 offen offset:1024
            buffer_store_dwordx4 {vr(R+8,4)}, v2, s[16:19], s68 offen
            buffer_store_dwordx4 {vr(R+12,4)}, v2, s[16:19], s68 offen offset:1024
            buffer_store_dwordx4 {vr(R+16,4)}, v2, s[16:19], s47 offen
            """)
        else:
            a(f"""
            ; H voffset v1 = (g'>>1)*1024 + (g'&1)*512 + t*16
            v_lshlrev_b32 v1, 10, v8
            v_add_u32 v1, v1, v9
            v_lshlrev_b32 v2, 4, v6
            v_add_u32 v1, v1, v2
            s_mul_i32 s66, s64, 112
            s_mul_i32 s47, s35, 14
            s_add_u32 s66, s66, s47
            s_lshl_b32 s66, s66, 10
            s_add_u32 s66, s66, {HF}
            s_lshl_b32 s47, s39, 13
            s_add_u32 s67, s66, s47
            s_lshl_b32 s47, s39, 3
            s_add_u32 s68, s66, s47
            s_add_u32 s68, s68, 6144
            """)
            k = 0
            for P in range(3):
                for tf in range(4):
                    d = tmp + (k % 16) * 4; k += 1
                    a(f"""
                    v_cvt_pk_bf16_f32 v{d}, v{A(2*P,tf,0)}, v{A(2*P,tf,1)}
                    v_cvt_pk_bf16_f32 v{d+1}, v{A(2*P,tf,2)}, v{A(2*P,tf,3)}
                    v_cvt_pk_bf16_f32 v{d+2}, v{A(2*P+1,tf,0)}, v{A(2*P+1,tf,1)}
                    v_cvt_pk_bf16_f32 v{d+3}, v{A(2*P+1,tf,2)}, v{A(2*P+1,tf,3)}
                    s_add_u32 s47, s67, {(tf>>1)*112*1024 + P*2048}
                    v_pk_max_i16 v{d}, v{d}, 0
                    v_pk_max_i16 v{d+1}, v{d+1}, 0
                    v_pk_max_i16 v{d+2}, v{d+2}, 0
                    v_pk_max_i16 v{d+3}, v{d+3}, 0
                    buffer_store_dwordx4 {vr(d,4)}, v1, s[16:19], s47 offen offset:{(tf&1)*256}
                    """)
            for tf in range(4):
                d = tmp + (k % 16) * 4; k += 1
                a(f"""
                v_cvt_pk_bf16_f32 v{d}, v{A(6,tf,0)}, v{A(6,tf,1)}
                v_cvt_pk_bf16_f32 v{d+1}, v{A(6,tf,2)}, v{A(6,tf,3)}
                s_add_u32 s47, s68, {(tf>>1)*112*1024}
                v_pk_max_i16 v{d}, v{d}, 0
                v_pk_max_i16 v{d+1}, v{d+1}, 0
                buffer_store_dwordx2 {vr(d,2)}, v1, s[16:19], s47 offen offset:{(tf&1)*256}
                """)
        a(f"""
        v_and_b32 v1, 31, v0
        v_cmp_eq_u32 vcc, 0, v1
        v_lshrrev_b32 v1, 5, v0
        v_lshlrev_b32 v1, 2, v1
        s_add_u32 s65, s65, {GF}
        s_and_saveexec_b64 s[74:75], vcc
        buffer_store_dword v23, v1, s[16:19], s65 offen
        s_endpgm
        """)

    body(True)
    a("K1_FFN:")
    body(False)
    a("K1_END:\ns_endpgm")
    return khead("gm_k1_kernel") + a.text() + kdesc("gm_k1_kernel", 224, 80)

HEADER = """; Kernarg layout for this problem (80 bytes, ptrs only, base s[0:1]):
"""

def main():
    kernels = [("gm_k1_kernel", 256, 256, K1_LDS, gen_k1)]
    try:
        import gen23
        kernels += gen23.kernels()
    except ImportError:
        pass
    out = HEADER
    for name, grid, block, lds, _ in kernels:
        out += f"; @launch kernel={name} grid=({grid},1,1) block=({block},1,1) lds={lds}\n"
    out += '.amdgcn_target "amdgcn-amd-amdhsa--gfx950"\n.text\n'
    for name, grid, block, lds, g in kernels:
        out += g()
    path = sys.argv[1] if len(sys.argv) > 1 else f"cdna_kernels/{NAME}.s"
    open(path, "w").write(out)
    print("wrote", path, len(out), "bytes")

if __name__ == "__main__":
    main()
```

```python
import sys, os, struct
NAME = "gated_mix__mha_block__dense_activation_relu__prompt"
KN = NAME + "_kernel"

KVF = 0x000000
HF  = 0x400000
W2F = 0xB00000
WOF = 0xCC0000
GF  = 0xD40000
FLG = 0xD48000
FA = FLG; FB = FLG + 0x1000; FC = FLG + 0x1400; F2 = FLG + 0x1800
OF  = 0xD50000
WS_BYTES = 0xF50000
QSCALE = 0.25 * 1.4426950408889634
STAMP = os.environ.get("STAMP", "") != ""
DBGW = WS_BYTES
if STAMP: WS_BYTES += 256*8*256
def env(k, d): return int(os.environ.get(k, d))

def f32hex(x): return "0x%08x" % struct.unpack("<I", struct.pack("<f", x))[0]
class Asm:
    def __init__(self): self.L = []
    def __call__(self, s):
        for line in s.strip("\n").split("\n"):
            line = line.strip()
            if not line: continue
            if line.endswith(":") or line.startswith("."): self.L.append(line)
            else: self.L.append("    " + line)
    def text(self): return "\n".join(self.L) + "\n"
def vr(b, n): return f"v[{b}:{b+n-1}]"
def srd(a, sd, sp, nbytes):
    a(f"""
    s_mov_b32 s{sd}, s{sp}
    s_and_b32 s{sd+1}, s{sp+1}, 0xffff
    s_mov_b32 s{sd+2}, {hex(nbytes)}
    s_mov_b32 s{sd+3}, 0x00020000
    """)
SV = [9]
def stamp(i, real=False):
    if not STAMP: return ""
    return f"""
    s_waitcnt lgkmcnt(0)
    {"s_memrealtime" if real else "s_memtime"} s[80:81]
    s_waitcnt lgkmcnt(0)
    v_writelane_b32 v{SV[0]}, s80, {i}
    """
def stamp_s(sreg, base):
    if not STAMP: return ""
    return f"""
    s_waitcnt lgkmcnt(0)
    s_memtime s[80:81]
    s_add_u32 s82, {sreg}, {base}
    s_waitcnt lgkmcnt(0)
    s_mov_b32 m0, s82
    s_nop 0
    v_writelane_b32 v{SV[0]}, s80, m0
    """
def stamp_move(new):
    old = SV[0]; SV[0] = new
    return f"v_mov_b32 v{new}, v{old}" if STAMP else ""
def stamp_flush(vt=2):
    if not STAMP: return ""
    return "\n".join(["s_waitcnt vmcnt(0)", stamp(5), stamp(7, True),
         "s_lshl_b32 s80, s2, 3", "s_add_u32 s80, s80, s37", "s_lshl_b32 s80, s80, 8", f"s_add_u32 s80, s80, {DBGW}",
         "s_mov_b64 exec, -1", f"v_lshlrev_b32 v{vt}, 2, v0",
         f"buffer_store_dword v{SV[0]}, v{vt}, s[16:19], s80 offen"])

STAGE = 49152; XOFF = 16384
SCR = 147456
QS = 131072
GL = 163840 - 2048
CTL = 163840 - 256
LDS = 163840
TMO = 1 << 16
NPC = 12

def gen():
    a = Asm()
    a(f"""
    s_cmp_ge_u32 s2, 256
    s_cbranch_scc1 M_END
    s_load_dwordx4 s[48:51], s[0:1], 0      ; x, wqkv
    s_load_dwordx2 s[52:53], s[0:1], 16     ; wo
    s_load_dwordx4 s[56:59], s[0:1], 32     ; w1, w2
    s_load_dwordx4 s[60:63], s[0:1], 48
    s_load_dwordx4 s[76:79], s[0:1], 64
    v_lshrrev_b32 v1, 6, v0
    v_and_b32 v0, 63, v0                    ; lane
    s_and_b32 s32, s2, 7                    ; xcd
    v_readfirstlane_b32 s37, v1             ; wave
    s_lshr_b32 s33, s2, 3                   ; j
    s_lshr_b32 s34, s32, 1                  ; hg
    s_lshl_b32 s34, s34, 3
    s_and_b32 s40, s33, 7
    s_add_u32 s34, s34, s40                 ; h
    s_and_b32 s35, s32, 1
    s_lshl_b32 s35, s35, 2
    s_lshr_b32 s40, s33, 3
    s_add_u32 s35, s35, s40                 ; b
    s_and_b32 s36, s37, 3                   ; wi
    s_lshr_b32 s38, s34, 3                  ; tg
    s_and_b32 s39, s34, 7                   ; ct
    v_lshlrev_b32 v1, 4, v0                 ; lane*16
    s_waitcnt lgkmcnt(0)
    """)
    a(stamp(0)); a(stamp(6, True))
    srd(a, 8, 48, 2048*512*2)
    srd(a, 12, 50, 512*1536*2)
    srd(a, 16, 78, WS_BYTES)
    srd(a, 20, 56, 512*1792*2)
    srd(a, 24, 58, 1792*512*2)
    srd(a, 28, 52, 512*512*2)
    srd(a, 64, 60, 1024)
    srd(a, 68, 62, 2048*512*2)
    srd(a, 72, 76, 256)
    a(f"""
    s_cmp_ge_u32 s37, 4
    s_cbranch_scc1 M_MAIN
    """)
    a(stamp_move(230))
    a(f"""
    s_setprio {env('APRIO', 1)}
    s_lshr_b32 s40, s33, 3
    s_lshl_b32 s40, s40, 1
    s_add_u32 s52, s40, s33
    s_and_b32 s52, s52, {7 if env('ROT', 1) else 0}
    v_lshrrev_b32 v2, 4, v0
    s_and_b32 s40, s36, 1
    s_lshl_b32 s40, s40, 2
    v_add_u32 v2, s40, v2
    v_and_b32 v3, 7, v0
    v_xor_b32 v2, v2, v3
    v_lshlrev_b32 v2, 4, v2
    v_lshrrev_b32 v4, 3, v0
    s_lshl_b32 s40, s35, 8
    s_lshl_b32 s41, s36, 3
    s_add_u32 s40, s40, s41
    v_add_u32 v5, s40, v4
    v_lshlrev_b32 v5, 10, v5
    v_add_u32 v10, v2, v5
    s_lshl_b32 s40, s52, 7
    v_add_u32 v10, s40, v10
    v_bfe_u32 v2, v0, 4, 1
    v_lshlrev_b32 v2, 1, v2
    v_xor_b32 v2, v2, v3
    v_lshlrev_b32 v2, 4, v2
    s_lshl_b32 s40, s52, 6
    s_lshl_b32 s41, s36, 4
    s_add_u32 s41, s41, s40                 ; 64c + 16w
    v_add_u32 v4, s41, v4
    v_mul_u32_u24 v4, 3584, v4
    v_add_u32 v4, v4, v2
    s_lshl_b32 s40, s34, 7
    s_cmp_lt_u32 s34, 28
    s_cselect_b32 s40, s40, 0x40000000
    v_add_u32 v13, s40, v4
    v_xor_b32 v14, 64, v13
    v_add_u32 v14, {8*3584}, v14
    v_lshrrev_b32 v2, 5, v0
    v_lshlrev_b32 v2, 1, v2
    v_and_b32 v3, 3, v0
    v_xor_b32 v2, v2, v3                    ; chunk_l
    v_lshrrev_b32 v3, 2, v0
    v_add_u32 v3, s41, v3                   ; row
    v_mul_u32_u24 v4, 3072, v3
    s_lshl_b32 s40, s34, 5
    v_add_u32 v4, s40, v4                   ; row*3072 + h*32
    v_and_b32 v5, 1, v2
    v_lshrrev_b32 v6, 1, v2
    v_lshlrev_b32 v7, 10, v5
    v_lshlrev_b32 v6, 4, v6
    v_add_u32 v11, v4, v7
    v_add_u32 v11, v11, v6                  ; P0
    v_lshlrev_b32 v5, 4, v5
    v_add_u32 v12, v4, v5
    v_add_u32 v12, 2048, v12                ; P1
    s_lshl_b32 s42, s36, 10                 ; w*1024
    s_mov_b32 s43, 0
    """)
    for i in range(1, 8): a(f"s_mov_b32 s{43+i}, {i*32768}")
    def dma_chunk():
        L = ["s_add_u32 s40, s43, s42", "s_add_u32 s41, s40, s42"]
        L += ["s_mov_b32 m0, s40", "s_add_u32 s52, s52, 1", "buffer_load_dwordx4 v11, s[12:15], 0 offen lds"]
        L += ["s_add_u32 m0, s40, 4096", "s_and_b32 s52, s52, 7", "buffer_load_dwordx4 v12, s[12:15], 0 offen lds", "s_cselect_b32 s53, 1, -7"]
        L += ["s_add_u32 m0, s41, 8192", "s_nop 0", "buffer_load_dwordx4 v13, s[20:23], 0 offen lds"]
        L += ["s_add_u32 m0, s41, 9216", "s_nop 0", "buffer_load_dwordx4 v14, s[20:23], 0 offen lds"]
        for i in range(8):
            so = "0" if i == 0 else f"s{43+i}"
            L += [f"s_add_u32 m0, s40, {XOFF + i*4096}", "s_nop 0", f"buffer_load_dwordx4 v10, s[8:11], {so} offen lds"]
        L.append(f"""
        s_lshl_b32 s40, s53, 7
        v_add_u32 v10, s40, v10
        s_mul_i32 s40, s53, {64*3072}
        v_add_u32 v11, s40, v11
        v_add_u32 v12, s40, v12
        s_mul_i32 s40, s53, {64*3584}
        v_add_u32 v13, s40, v13
        v_add_u32 v14, s40, v14
        s_add_u32 s43, s43, {STAGE}
        s_cmp_eq_u32 s43, {3*STAGE}
        s_cselect_b32 s43, 0, s43
        """)
        return "\n".join(L)
    a(f"""
    s_mov_b32 s51, -2
    A_LOOP:
    s_cmp_lt_i32 s51, 0
    s_cbranch_scc1 A_L1
    s_waitcnt vmcnt({NPC}) lgkmcnt(0)
    {stamp_s("s51", 16)}
    s_barrier                               ; B0..B5
    A_L1:
    {dma_chunk()}
    s_cmp_lg_i32 s51, -1
    s_cbranch_scc1 A_L2
    v_lshlrev_b32 v2, 2, v0
    v_add_u32 v2, {CTL}, v2
    v_cmp_eq_u32 vcc, 8, v0
    v_mov_b32 v3, 0
    s_nop 0
    v_cndmask_b32 v3, v3, 4, vcc            ; cnt[8] = 4
    ds_write_b32 v2, v3
    A_L2:
    s_add_i32 s51, s51, 1
    s_cmp_lt_i32 s51, 6
    s_cbranch_scc1 A_LOOP
    s_waitcnt vmcnt({NPC})
    {stamp(22)}
    s_barrier                               ; B6
    v_mov_b32 v2, 0
    buffer_load_dword v20, v2, s[72:75], 0 offen sc1
    s_lshl_b32 s40, s35, 8
    s_lshl_b32 s41, s34, 3
    s_add_u32 s40, s40, s41
    s_lshl_b32 s41, s36, 1
    s_add_u32 s40, s40, s41
    s_lshl_b32 s63, s40, 2
    s_add_u32 s63, s63, {GF}
    s_lshl_b32 s40, s40, 10
    v_lshrrev_b32 v2, 5, v0
    v_lshlrev_b32 v2, 10, v2
    v_and_b32 v3, 31, v0
    v_lshlrev_b32 v3, 5, v3
    v_add_u32 v2, v2, v3
    buffer_load_dwordx4 v[40:43], v2, s[8:11], s40 offen
    buffer_load_dwordx4 v[44:47], v2, s[8:11], s40 offen offset:16
    buffer_load_dwordx4 v[48:51], v3, s[64:67], 0 offen
    buffer_load_dwordx4 v[52:55], v3, s[64:67], 0 offen offset:16
    s_lshl_b32 s56, s38, 3
    s_add_u32 s56, s56, s35                 ; u
    s_and_b32 s58, s36, 1
    s_lshl_b32 s40, s39, 1
    s_add_u32 s58, s58, s40                 ; cb
    s_lshr_b32 s57, s36, 1
    s_lshl_b32 s40, s56, 1
    s_add_u32 s57, s57, s40                 ; group = 2u + (w>>1)
    v_lshrrev_b32 v2, 2, v0
    v_lshlrev_b32 v2, 10, v2
    v_and_b32 v3, 3, v0
    v_lshlrev_b32 v3, 4, v3
    v_add_u32 v2, v2, v3
    s_lshl_b32 s40, s58, 6
    v_add_u32 v2, s40, v2
    s_mul_i32 s59, s36, 3072
    s_add_u32 s59, s59, {SCR}
    s_lshl_b32 s40, s57, 15
    s_mov_b32 m0, s59
    s_add_u32 s41, s40, 16384
    buffer_load_dwordx4 v2, s[24:27], s40 offen lds
    s_add_u32 m0, s59, 1024
    s_lshl_b32 s40, s56, 14
    buffer_load_dwordx4 v2, s[24:27], s41 offen lds
    s_add_u32 m0, s59, 2048
    s_nop 0
    buffer_load_dwordx4 v2, s[28:31], s40 offen lds
    s_waitcnt vmcnt(8)
    {stamp(23)}
    s_barrier                               ; B7
    v_lshrrev_b32 v2, 5, v0
    v_lshlrev_b32 v21, 2, v2
    v_bfe_u32 v3, v0, 2, 2
    v_add_u32 v21, v21, v3
    v_lshlrev_b32 v21, 6, v21
    v_bfe_u32 v3, v0, 4, 1
    v_lshlrev_b32 v3, 5, v3
    v_add_u32 v21, v21, v3
    v_and_b32 v3, 1, v0
    v_lshlrev_b32 v3, 4, v3
    v_add_u32 v21, v21, v3
    v_bfe_u32 v3, v0, 1, 1
    v_lshlrev_b32 v3, 3, v3
    v_add_u32 v21, v21, v3
    v_add_u32 v21, s59, v21
    s_mul_i32 s40, s58, 112
    s_lshl_b32 s41, s57, 1
    s_add_u32 s40, s40, s41
    s_lshl_b32 s40, s40, 10
    s_add_u32 s60, s40, {W2F}
    s_lshl_b32 s41, s58, 5
    s_add_u32 s41, s41, s56
    s_lshl_b32 s41, s41, 10
    s_add_u32 s61, s41, {WOF}
    v_add_u32 v4, s35, v0
    v_and_b32 v4, 7, v4
    v_lshlrev_b32 v4, 4, v4
    s_lshl_b32 s41, s34, 7
    s_lshl_b32 s40, s36, 2
    s_add_u32 s41, s41, s40
    s_add_u32 s41, s41, {FA}
    v_add_u32 v4, s41, v4
    v_lshlrev_b32 v5, 2, v0
    v_add_u32 v5, {CTL}, v5                 ; cnt[lane]
    v_mov_b32 v6, 1
    v_mov_b32 v7, {CTL+48}
    s_add_u32 s40, s40, {CTL+112}
    v_mov_b32 v22, s40
    s_lshl_b32 s40, s35, 7
    s_lshl_b32 s41, s34, 2
    s_add_u32 s40, s40, s41
    s_add_u32 s40, s40, {FB}
    s_lshl_b32 s41, s56, 2
    s_lshl_b32 s62, s39, 7
    s_add_u32 s41, s41, s62
    s_add_u32 s41, s41, {FC}
    v_mov_b32 v8, s41
    v_mov_b32 v3, s40
    v_cmp_eq_u32 vcc, 0, v0
    s_lshl_b32 s40, s36, 12
    v_add_u32 v2, s40, v1
    v_cndmask_b32 v8, v8, v3, vcc
    s_lshl_b32 s55, s34, 17
    s_add_u32 s55, s55, s40
    s_lshl_b32 s41, s35, 14
    s_add_u32 s41, s41, s55
    s_barrier                               ; B8
    s_barrier                               ; BY
    {stamp(1)}
    ds_read_b128 v[24:27], v2
    ds_read_b128 v[28:31], v2 offset:1024
    ds_read_b128 v[32:35], v2 offset:2048
    ds_read_b128 v[36:39], v2 offset:3072
    s_waitcnt lgkmcnt(3)
    buffer_store_dwordx4 v[24:27], v1, s[16:19], s41 offen sc1
    s_waitcnt lgkmcnt(2)
    buffer_store_dwordx4 v[28:31], v1, s[16:19], s41 offen offset:1024 sc1
    s_waitcnt lgkmcnt(1)
    buffer_store_dwordx4 v[32:35], v1, s[16:19], s41 offen offset:2048 sc1
    s_waitcnt lgkmcnt(0)
    buffer_store_dwordx4 v[36:39], v1, s[16:19], s41 offen offset:3072 sc1
    s_waitcnt vmcnt(4)
    ds_read_b64_tr_b16 v[56:57], v21
    ds_read_b64_tr_b16 v[58:59], v21 offset:1024
    ds_read_b64_tr_b16 v[60:61], v21 offset:512
    ds_read_b64_tr_b16 v[62:63], v21 offset:1536
    ds_read_b64_tr_b16 v[64:65], v21 offset:2048
    ds_read_b64_tr_b16 v[66:67], v21 offset:2560
    v_dot2_f32_bf16 v23, v40, v48, 0
    v_dot2_f32_bf16 v2, v41, v49, 0
    v_dot2_f32_bf16 v23, v42, v50, v23
    v_dot2_f32_bf16 v2, v43, v51, v2
    v_dot2_f32_bf16 v23, v44, v52, v23
    v_dot2_f32_bf16 v2, v45, v53, v2
    v_dot2_f32_bf16 v23, v46, v54, v23
    v_dot2_f32_bf16 v2, v47, v55, v2
    v_readfirstlane_b32 s54, v20            ; epoch
    s_nop 2
    v_add_f32 v23, v23, v2
    s_nop 1
    v_add_f32_dpp v23, v23, v23 quad_perm:[1,0,3,2] row_mask:0xf bank_mask:0xf
    s_nop 1
    v_add_f32_dpp v23, v23, v23 quad_perm:[2,3,0,1] row_mask:0xf bank_mask:0xf
    s_nop 1
    v_add_f32_dpp v23, v23, v23 row_half_mirror row_mask:0xf bank_mask:0xf
    s_nop 1
    v_add_f32_dpp v23, v23, v23 row_mirror row_mask:0xf bank_mask:0xf
    s_nop 1
    ds_swizzle_b32 v2, v23 offset:0x401F
    s_waitcnt lgkmcnt(0)
    v_add_f32 v23, v23, v2
    v_mul_f32 v23, {f32hex(-1.4426950408889634)}, v23
    v_exp_f32 v23, v23
    v_mov_b32 v2, 0
    v_add_f32 v23, 1.0, v23
    v_rcp_f32 v23, v23
    s_mov_b32 s51, 0
    A_EP:
    s_cmp_lg_u32 s54, 0
    s_cbranch_scc1 A_EPD
    buffer_load_dword v20, v2, s[72:75], 0 offen sc1
    s_add_u32 s51, s51, 1
    s_waitcnt vmcnt(0)
    v_readfirstlane_b32 s54, v20
    s_cmp_lt_u32 s51, {TMO}
    s_cbranch_scc1 A_EP
    A_EPD:
    v_mov_b32 v2, {CTL+64}
    ds_write_b32 v2, v20
    s_waitcnt vmcnt(0)
    s_mov_b64 exec, 1
    buffer_store_dword v20, v4, s[16:19], 0 offen sc1
    s_mov_b64 exec, -1
    {stamp(2)}
    buffer_store_dwordx4 v[64:67], v1, s[16:19], s61 offen sc1
    v_lshrrev_b32 v2, 5, v0
    v_lshlrev_b32 v2, 2, v2
    s_mov_b32 s40, 1
    s_mov_b32 s41, 1
    s_mov_b64 exec, s[40:41]
    buffer_store_dword v23, v2, s[16:19], s63 offen sc1
    s_mov_b64 exec, -1
    s_cmp_ge_u32 s56, 28
    s_cbranch_scc1 A_NOW2
    buffer_store_dwordx4 v[56:59], v1, s[16:19], s60 offen sc1
    buffer_store_dwordx4 v[60:63], v1, s[16:19], s60 offen offset:1024 sc1
    A_NOW2:
    s_mov_b32 s56, 1                        ; issued
    s_mov_b32 s57, 1                        ; signaled
    s_mov_b32 s58, 1                        ; cap
    s_mov_b32 s59, s36
    s_mov_b32 s51, 0
    """)
    PUBCHK = f"""
    ds_read_b128 v[24:27], v7
    ds_read_b128 v[28:31], v7 offset:64
    s_waitcnt lgkmcnt(0)
    v_and_b32 v24, v24, v25
    v_and_b32 v26, v26, v27
    v_and_b32 v28, v28, v29
    v_and_b32 v30, v30, v31
    v_and_b32 v24, v24, v26
    v_and_b32 v28, v28, v30
    v_and_b32 v24, v24, v28
    s_nop 0
    v_readfirstlane_b32 s59, v24
    s_cmp_eq_u32 s59, 0
    """
    PUB = """
    s_mov_b64 exec, 3
    buffer_store_dword v20, v8, s[16:19], 0 offen sc1
    s_mov_b64 exec, -1
    """
    a(f"""
    A_LD:
    s_mov_b64 exec, 0xff
    buffer_load_dword v3, v4, s[16:19], 0 offen sc1
    s_mov_b64 exec, -1
    s_cmp_lg_u32 s59, 0
    s_cbranch_scc1 A_LD1
    {PUBCHK}
    s_cbranch_scc1 A_LD1
    {PUB}
    A_LD1:
    s_waitcnt vmcnt(0)
    ds_write_b32 v22, v6
    s_cmp_eq_u32 s57, s56
    s_cbranch_scc1 A_LD2
    s_lshl_b32 s40, 1, s56
    s_lshl_b32 s41, 1, s57
    s_sub_u32 s40, s40, s41
    s_mov_b32 s41, 0
    s_mov_b64 exec, s[40:41]
    ds_add_u32 v5, v6
    s_mov_b64 exec, -1
    {stamp_s("s57", 24)}
    s_mov_b32 s57, s56
    A_LD2:
    s_cmp_eq_u32 s57, 8
    s_cbranch_scc1 A_LDD
    v_cmp_eq_u32 vcc, s54, v3
    s_add_u32 s51, s51, 1
    s_cmp_ge_u32 s51, {TMO}
    s_cselect_b32 s60, -1, 0
    s_add_u32 s61, s56, s58
    s_min_u32 s61, s61, 8
    s_or_b32 s60, s60, vcc_lo
    A_LD3:
    s_bitcmp1_b32 s60, s56
    s_cbranch_scc0 A_LD
    s_add_u32 s40, s35, s56
    s_and_b32 s40, s40, 7
    s_lshl_b32 s40, s40, 14
    s_add_u32 s40, s40, s55
    s_lshl_b32 s41, s56, 14
    s_lshl_b32 s62, s36, 12
    s_add_u32 m0, s41, s62
    s_nop 0
    buffer_load_dwordx4 v1, s[16:19], s40 offen sc1 lds
    buffer_load_dwordx4 v1, s[16:19], s40 offen offset:1024 sc1 lds
    buffer_load_dwordx4 v1, s[16:19], s40 offen offset:2048 sc1 lds
    buffer_load_dwordx4 v1, s[16:19], s40 offen offset:3072 sc1 lds
    s_add_u32 s56, s56, 1
    s_cmp_lt_u32 s56, s61
    s_cbranch_scc1 A_LD3
    s_lshl_b32 s58, s58, 1
    s_branch A_LD
    A_LDD:
    {stamp(3)}
    s_cmp_lg_u32 s59, 0
    s_cbranch_scc1 A_PUBD
    A_PUB:
    {PUBCHK}
    s_cbranch_scc0 A_PUB2
    s_sleep 2
    s_branch A_PUB
    A_PUB2:
    {PUB}
    A_PUBD:
    {stamp(8)}
    s_lshl_b32 s40, s35, 7
    s_add_u32 s40, s40, {FB}
    s_lshl_b32 s41, s39, 7
    s_add_u32 s41, s41, {FC - 128}
    v_mov_b32 v3, s40
    v_mov_b32 v4, s41
    v_cmp_gt_u32 vcc, 32, v0
    v_lshlrev_b32 v5, 2, v0
    s_nop 0
    v_cndmask_b32 v4, v4, v3, vcc
    v_add_u32 v4, v4, v5
    s_mov_b32 s51, 0
    A_FB:
    buffer_load_dword v3, v4, s[16:19], 0 offen sc1
    s_add_u32 s51, s51, 1
    s_waitcnt vmcnt(0)
    v_cmp_eq_u32 vcc, s54, v3
    s_cmp_ge_u32 s51, {TMO}
    s_cbranch_scc1 A_FBD
    s_cmp_eq_u64 vcc, exec
    s_cbranch_scc1 A_FBD
    s_sleep 4
    s_branch A_FB
    A_FBD:
    {stamp(9)}
    s_lshl_b32 s40, s35, 10
    s_add_u32 s40, s40, {GF}
    s_lshl_b32 s41, s36, 8
    s_add_u32 s41, s41, s40
    buffer_load_dword v3, v5, s[16:19], s41 offen sc1
    s_lshl_b32 s41, s38, 8
    s_add_u32 s41, s41, s40
    v_and_b32 v4, 31, v0
    v_lshlrev_b32 v4, 2, v4
    buffer_load_dword v6, v4, s[16:19], s41 offen sc1
    buffer_load_dword v7, v4, s[16:19], s41 offen offset:128 sc1
    s_lshl_b32 s40, s35, 2
    s_add_u32 s40, s40, s38                 ; tokb64
    s_mul_i32 s45, s40, {2*112*1024}
    s_mul_i32 s41, s36, {28*1024}
    s_add_u32 s45, s45, s41
    s_add_u32 s45, s45, {HF}
    s_add_u32 s46, s45, {112*1024}
    s_mul_i32 s48, s39, {2*112*1024}
    s_add_u32 s48, s48, s41
    s_add_u32 s48, s48, {W2F}
    s_add_u32 s49, s48, {112*1024}
    v_add_u32 v10, 4096, v1
    """)
    GA = 16; GB = 80; D = 7
    def gload(buf):
        b = GB + buf*16
        vo, off = ("v1", buf*1024) if buf < 4 else ("v10", (buf-4)*1024)
        return f"""
        buffer_load_dwordx4 {vr(b,4)}, {vo}, s[16:19], s48 offen offset:{off} sc1
        buffer_load_dwordx4 {vr(b+4,4)}, {vo}, s[16:19], s45 offen offset:{off} sc1
        buffer_load_dwordx4 {vr(b+8,4)}, {vo}, s[16:19], s46 offen offset:{off} sc1
        buffer_load_dwordx4 {vr(b+12,4)}, {vo}, s[16:19], s49 offen offset:{off} sc1
        """
    PACE = env('PACE', 0)
    def gmfma(buf):
        b = GB + buf*16
        w0, h0, h1, w1 = vr(b,4), vr(b+4,4), vr(b+8,4), vr(b+12,4)
        L = []
        for cb, w_ in ((0, w0), (1, w1)):
            for tb, h_ in ((0, h0), (1, h1)):
                acc = vr(GA + (cb*2+tb)*16, 16)
                L.append(f"v_mfma_f32_32x32x16_bf16 {acc}, {w_}, {h_}, {acc}")
                if PACE: L.append(f"s_sleep {PACE}")
        return "\n".join(L)
    for s in range(D): a(gload(s))
    for r in range(GA, GA+64): a(f"v_mov_b32 v{r}, 0")
    a(f"""
    s_waitcnt vmcnt({4*D})
    s_lshl_b32 s40, s36, 8
    s_add_u32 s40, s40, {GL}
    v_add_u32 v4, s40, v5
    ds_write_b32 v4, v3
    s_lshl_b32 s40, s36, 2
    s_add_u32 s40, s40, {CTL+80}
    v_mov_b32 v4, s40
    v_mov_b32 v3, 1
    s_waitcnt lgkmcnt(0)
    ds_write_b32 v4, v3
    v_sub_f32 v6, 1.0, v6
    v_sub_f32 v7, 1.0, v7
    s_mov_b32 s51, 0
    A_GL:
    s_add_u32 s45, s45, {D*1024}
    s_add_u32 s46, s46, {D*1024}
    s_add_u32 s48, s48, {D*1024}
    s_add_u32 s49, s49, {D*1024}
    """)
    for s in range(D):
        a(f"s_waitcnt vmcnt({4*D-4})")
        a(gmfma(s))
        a(gload(s))
    a(f"""
    s_add_u32 s51, s51, 1
    s_cmp_lt_u32 s51, 3
    s_cbranch_scc1 A_GL
    """)
    for s in range(D):
        a(f"s_waitcnt vmcnt({4*(D-1-s)})")
        a(gmfma(s))
    a(f"""
    {stamp(4)}
    s_lshl_b32 s48, s39, 16
    s_lshl_b32 s41, s36, 13
    s_add_u32 s48, s48, s41
    s_add_u32 s48, s48, {WOF}
    s_add_u32 s49, s48, 32768
    """)
    for k in range(8):
        vo, off = ("v1", k*1024) if k < 4 else ("v10", (k-4)*1024)
        a(f"buffer_load_dwordx4 {vr(GB+k*8,4)}, {vo}, s[16:19], s48 offen offset:{off} sc1")
        a(f"buffer_load_dwordx4 {vr(GB+k*8+4,4)}, {vo}, s[16:19], s49 offen offset:{off} sc1")
    a("s_nop 7")
    for cb in range(2):
        for tb in range(2):
            for r in range(16):
                A0 = GA + (cb*2+tb)*16 + r
                a(f"v_mul_f32 v{A0}, v{6+tb}, v{A0}")
    OB = GB + 64
    a(f"""
    s_lshl_b32 s40, s35, 2
    s_add_u32 s40, s40, s38                 ; tokb64
    s_lshl_b32 s45, s40, 16
    s_add_u32 s45, s45, s41
    s_add_u32 s45, s45, {OF}
    s_add_u32 s46, s45, 32768
    s_lshl_b32 s47, s40, 7
    s_lshl_b32 s41, s36, 5
    s_add_u32 s47, s47, s41
    s_add_u32 s47, s47, {F2}
    v_and_b32 v4, 7, v0
    v_lshlrev_b32 v4, 2, v4
    s_lshr_b32 s41, s36, 1                  ; cb
    s_and_b32 s42, s36, 1                   ; tb
    s_lshl_b32 s43, s40, 1
    s_add_u32 s43, s43, s42                 ; tokblk32
    s_lshl_b32 s44, s39, 1
    s_add_u32 s44, s44, s41                 ; colblk32
    s_lshl_b32 s43, s43, 15
    s_lshl_b32 s44, s44, 6
    s_add_u32 s44, s44, s43
    v_and_b32 v2, 31, v0
    v_lshlrev_b32 v2, 10, v2
    v_lshrrev_b32 v3, 5, v0
    v_lshlrev_b32 v3, 4, v3
    v_add_u32 v13, v2, v3
    s_lshl_b32 s41, s36, 12
    v_add_u32 v11, s41, v1
    s_lshl_b32 s41, s36, 14
    v_add_u32 v12, s41, v1
    s_setprio 3
    s_barrier
    {stamp(10)}
    s_mov_b32 s51, 0
    A_F2:
    buffer_load_dword v3, v4, s[16:19], s47 offen sc1
    s_add_u32 s51, s51, 1
    s_waitcnt vmcnt(0)
    v_cmp_eq_u32 vcc, s54, v3
    s_cmp_ge_u32 s51, {TMO}
    s_cbranch_scc1 A_F2D
    s_cmp_eq_u64 vcc, exec
    s_cbranch_scc0 A_F2
    A_F2D:
    {stamp(11)}
    """)
    for k in range(8):
        vo, off = ("v1", k*1024) if k < 4 else ("v10", (k-4)*1024)
        a(f"buffer_load_dwordx4 {vr(OB+k*8,4)}, {vo}, s[16:19], s45 offen offset:{off} sc1")
        a(f"buffer_load_dwordx4 {vr(OB+k*8+4,4)}, {vo}, s[16:19], s46 offen offset:{off} sc1")
    for k in range(8):
        a(f"s_waitcnt vmcnt({14 - 2*k})")
        for cb in range(2):
            for tb in range(2):
                acc = vr(GA + (cb*2+tb)*16, 16)
                a(f"v_mfma_f32_32x32x16_bf16 {acc}, {vr(GB+k*8+4*cb,4)}, {vr(OB+k*8+4*tb,4)}, {acc}")
    a(stamp(12))
    a("s_nop 7\ns_nop 3")
    for q in range(4):
        for i in range(4):
            a(f"ds_write_b128 v11, {vr(GA+q*16+4*i,4)} offset:{q*16384 + i*1024}")
    a("s_waitcnt lgkmcnt(0)\ns_barrier")
    for s in range(4):
        for i in range(4):
            a(f"ds_read_b128 {vr(GA+s*16+4*i,4)}, v12 offset:{s*4096 + i*1024}")
    a("s_waitcnt lgkmcnt(8)")
    for r in range(16): a(f"v_add_f32 v{GA+r}, v{GA+r}, v{GA+16+r}")
    a("s_waitcnt lgkmcnt(0)")
    for r in range(16): a(f"v_add_f32 v{GA+32+r}, v{GA+32+r}, v{GA+48+r}")
    for r in range(16): a(f"v_add_f32 v{GA+r}, v{GA+r}, v{GA+32+r}")
    for r in range(8): a(f"v_cvt_pk_bf16_f32 v{4+r}, v{GA+2*r}, v{GA+2*r+1}")
    a(f"""
    buffer_store_dwordx4 v[4:7], v13, s[68:71], s44 offen
    buffer_store_dwordx4 v[8:11], v13, s[68:71], s44 offen offset:32
    {stamp(13)}
    {stamp_flush(20)}
    s_endpgm
    """)

    SV[0] = 9
    XF = [24, 40]; WFr = [56, 84]; ACC = 112; NB = 7
    a(f"""
    M_MAIN:
    s_setprio {env('MPRIO', 0)}
    s_or_b32 s40, s2, s36
    s_cmp_lg_u32 s40, 0
    s_cbranch_scc1 M_NOEP
    s_memrealtime s[40:41]
    s_waitcnt lgkmcnt(0)
    s_or_b32 s40, s40, 1
    v_mov_b32 v3, s40
    v_mov_b32 v2, 0
    s_mov_b64 exec, 1
    buffer_store_dword v3, v2, s[72:75], 0 offen sc1
    s_mov_b64 exec, -1
    M_NOEP:
    v_and_b32 v6, 15, v0
    v_lshrrev_b32 v7, 4, v0
    v_lshrrev_b32 v8, 1, v6
    v_xor_b32 v8, v8, v7
    v_lshlrev_b32 v8, 4, v8
    s_lshl_b32 s40, s36, 6
    v_add_u32 v2, s40, v6
    v_lshlrev_b32 v2, 7, v2
    v_add_u32 v2, v2, v8
    v_add_u32 v224, {XOFF}, v2
    v_xor_b32 v225, 64, v224
    v_lshlrev_b32 v8, 3, v7
    v_bfe_u32 v2, v0, 2, 2                  ; r
    v_add_u32 v8, v8, v2                    ; 8g+r
    v_and_b32 v3, 1, v7                     ; g&1
    v_and_b32 v4, 3, v0
    v_lshlrev_b32 v4, 3, v4                 ; 8c
    v_lshlrev_b32 v5, 6, v8
    v_add_u32 v5, v5, v4
    v_lshlrev_b32 v10, 5, v3
    v_add_u32 v226, v5, v10
    v_xor_b32 v227, 32, v226
    v_lshlrev_b32 v5, 7, v8
    v_add_u32 v5, v5, v4
    v_lshrrev_b32 v2, 1, v2
    v_lshlrev_b32 v3, 1, v3
    v_or_b32 v2, v2, v3
    v_lshlrev_b32 v2, 5, v2
    v_add_u32 v5, v5, v2
    v_add_u32 v228, 8192, v5
    v_xor_b32 v229, 32, v228
    v_xor_b32 v230, 64, v228
    v_xor_b32 v231, 0x60, v228
    """)
    for r in range(8): a(f"v_mov_b32 v{10+r}, v{224+r}")
    for r in range(ACC, ACC + NB*16): a(f"v_mov_b32 v{r}, 0")
    a(f"""
    {stamp(1)}
    s_barrier                               ; B0
    """)
    def reads(ks, st):
        xs = [f"ds_read_b128 {vr(XF[st]+4*tf,4)}, v{10+ks} offset:{tf*2048}" for tf in range(4)]
        ws = []
        for b in range(NB):
            for hh in range(2):
                if b < 3:
                    p, u = (0, b) if b < 2 else (1, 0)
                    ws.append(f"ds_read_b64_tr_b16 {vr(WFr[st]+4*b+2*hh,2)}, v{12+u} offset:{p*4096 + ks*2048 + hh*256}")
                else:
                    ws.append(f"ds_read_b64_tr_b16 {vr(WFr[st]+4*b+2*hh,2)}, v{14+b-3} offset:{ks*4096 + hh*512}")
        return xs[:1] + ws[:2] + xs[1:] + ws[2:]
    def mfmas(st):
        L = []
        for b in range(NB):
            for tf in range(4):
                acc = vr(ACC + (b*4+tf)*4, 4)
                w_, x_ = vr(WFr[st]+4*b, 4), vr(XF[st]+4*tf, 4)
                if b == 2: L.append(f"v_mfma_f32_16x16x32_bf16 {acc}, {x_}, {w_}, {acc}")
                else: L.append(f"v_mfma_f32_16x16x32_bf16 {acc}, {w_}, {x_}, {acc}")
        return L
    for x in reads(0, 0): a(x)
    a(f"""
    s_mov_b32 s41, 0
    s_mov_b32 s42, 0
    M_ALOOP:
    s_waitcnt lgkmcnt(0)
    """)
    r1 = reads(1, 1)
    for i, m in enumerate(mfmas(0)):
        a(m)
        if i < len(r1): a(r1[i])
        if i == 18: a(f"s_add_u32 s42, s42, {STAGE}\ns_cmp_eq_u32 s42, {3*STAGE}\ns_cselect_b32 s42, 0, s42")
        if 19 <= i < 27: a(f"v_add_u32 v{10+i-19}, s42, v{224+i-19}")
    a(f"""
    s_waitcnt lgkmcnt(0)
    s_barrier
    """)
    r0 = reads(0, 0)
    for i, m in enumerate(mfmas(1)):
        a(m)
        if i < len(r0): a(r0[i])
    a(f"""
    s_add_u32 s41, s41, 1
    s_cmp_lt_u32 s41, 8
    s_cbranch_scc1 M_ALOOP
    {stamp(2)}
    """)
    A = lambda b, tf, r: ACC + (b*4+tf)*4 + r
    a(f"""
    ; v6 = t, v7 = g'
    v_lshrrev_b32 v8, 5, v0                 ; g'>>1
    v_and_b32 v23, 1, v7
    v_lshlrev_b32 v23, 9, v23               ; (g'&1)*512
    v_lshlrev_b32 v2, 4, v6
    s_lshl_b32 s40, s36, 11
    s_add_u32 s40, s40, {QS}
    v_add_u32 v2, s40, v2
    v_add_u32 v2, v2, v23
    v_lshrrev_b32 v3, 3, v6
    v_lshlrev_b32 v3, 8, v3
    v_and_b32 v4, 7, v6
    v_lshlrev_b32 v4, 4, v4
    v_add_u32 v3, v3, v4
    v_add_u32 v3, v3, v23
    s_lshl_b32 s40, s36, 12
    v_add_u32 v3, s40, v3
    v_cmp_gt_u32 vcc, 32, v0
    v_mov_b32 v4, 1.0
    v_mov_b32 v5, {f32hex(QSCALE)}
    v_cndmask_b32 v10, v3, v2, vcc          ; tf=0
    v_cndmask_b32 v17, v4, v5, vcc          ; scale
    v_mov_b32 v4, 128
    v_mov_b32 v5, 256
    v_cndmask_b32 v4, v4, v5, vcc
    v_add_u32 v11, v10, v4                  ; tf=1
    v_mov_b32 v2, 2048
    v_mov_b32 v3, 1024
    v_cndmask_b32 v2, v2, v3, vcc
    v_add_u32 v12, v10, v2                  ; tf=2
    v_add_u32 v13, v11, v2                  ; tf=3
    v_lshlrev_b32 v3, 8, v8
    v_add_u32 v3, v3, v23
    v_lshlrev_b32 v4, 4, v6
    v_add_u32 v3, v3, v4
    v_add_u32 v3, s40, v3
    s_waitcnt lgkmcnt(0)
    """)
    for tf in range(4):
        d = 24 + tf*4
        for r in range(4):
            a(f"v_mul_f32 v{A(0,tf,r)}, v17, v{A(0,tf,r)}")
            a(f"v_mul_f32 v{A(1,tf,r)}, v17, v{A(1,tf,r)}")
        a(f"""
        v_cvt_pk_bf16_f32 v{d}, v{A(0,tf,0)}, v{A(0,tf,1)}
        v_cvt_pk_bf16_f32 v{d+1}, v{A(0,tf,2)}, v{A(0,tf,3)}
        v_cvt_pk_bf16_f32 v{d+2}, v{A(1,tf,0)}, v{A(1,tf,1)}
        v_cvt_pk_bf16_f32 v{d+3}, v{A(1,tf,2)}, v{A(1,tf,3)}
        ds_write_b128 v{10+tf}, {vr(d,4)}
        """)
    for p in range(2):
        d = 40 + p*4
        a(f"""
        v_cvt_pk_bf16_f32 v{d}, v{A(2,2*p,0)}, v{A(2,2*p,1)}
        v_cvt_pk_bf16_f32 v{d+1}, v{A(2,2*p,2)}, v{A(2,2*p,3)}
        v_cvt_pk_bf16_f32 v{d+2}, v{A(2,2*p+1,0)}, v{A(2,2*p+1,1)}
        v_cvt_pk_bf16_f32 v{d+3}, v{A(2,2*p+1,2)}, v{A(2,2*p+1,3)}
        ds_write_b128 v3, {vr(d,4)} offset:{1024 + p*2048}
        """)
    a(f"""
    s_waitcnt lgkmcnt(0)
    s_barrier                               ; BY
    s_lshl_b32 s40, s35, 3
    s_lshl_b32 s41, s36, 1
    s_add_u32 s40, s40, s41
    s_mul_i32 s40, s40, 112
    s_lshl_b32 s41, s34, 2
    s_add_u32 s40, s40, s41
    s_lshl_b32 s40, s40, 10
    s_add_u32 s56, s40, {HF}
    s_add_u32 s58, s56, {112*1024}
    """)
    def hpair(b0, tf, d):
        return f"""
        v_cvt_pk_bf16_f32 v{d}, v{A(b0,tf,0)}, v{A(b0,tf,1)}
        v_cvt_pk_bf16_f32 v{d+1}, v{A(b0,tf,2)}, v{A(b0,tf,3)}
        v_cvt_pk_bf16_f32 v{d+2}, v{A(b0+1,tf,0)}, v{A(b0+1,tf,1)}
        v_cvt_pk_bf16_f32 v{d+3}, v{A(b0+1,tf,2)}, v{A(b0+1,tf,3)}
        v_pk_max_i16 v{d}, v{d}, 0
        v_pk_max_i16 v{d+1}, v{d+1}, 0
        v_pk_max_i16 v{d+2}, v{d+2}, 0
        v_pk_max_i16 v{d+3}, v{d+3}, 0
        """
    for tf in range(4): a(hpair(3, tf, 224 + tf*4))
    for tf in range(4): a(hpair(5, tf, 240 + tf*4))
    a(f"""
    v_lshlrev_b32 v222, 10, v8
    v_add_u32 v222, v222, v23
    v_lshlrev_b32 v3, 4, v6
    v_add_u32 v222, v222, v3                ; (g'>>1)*1024 + (g'&1)*512 + t*16
    {stamp_move(150)}
    """)
    def hstores():
        L = ["s_cmp_ge_u32 s34, 28", "s_cbranch_scc1 M_HD"]
        for pr in range(2):
            for tf in range(4):
                L.append(f"buffer_store_dwordx4 {vr(224+pr*16+tf*4,4)}, v222, s[16:19], s{56 + 2*(tf>>1)} offen offset:{pr*2048 + (tf&1)*256} sc1")
        L.append("M_HD:")
        return "\n".join(L)
    Q = [8, 12]; KB = [16, 20]; VB = [24, 32]; P = 40; S = [48, 64]; O = [80, 96]; C = [112, 128]
    VCH = 4; VCA = 5; VFS = 6; VONE = 7
    def vinit():
        L = []
        if env('ZROWS', 1):
            L += ["v_and_b32 v2, 27, v0", "v_cmp_eq_u32 vcc, 16, v2", "v_mov_b32 v2, 0", "v_mov_b32 v3, 0x3f803f80", "s_nop 0", "v_cndmask_b32 v2, v2, v3, vcc"]
        else:
            L += ["v_mov_b32 v2, 0x3f803f80"]
        L += [f"v_mov_b32 v{r}, v2" for r in range(24, 40)]
        return "\n".join(L)
    a(f"""
    s_lshl_b32 s40, s36, 11
    s_add_u32 s40, s40, {QS}
    v_add_u32 v2, s40, v1
    ds_read_b128 {vr(Q[0],4)}, v2
    ds_read_b128 {vr(Q[1],4)}, v2 offset:1024
    ds_read_b128 {vr(KB[0],4)}, v1
    s_mov_b32 s52, 0x0000ffff
    s_mov_b32 s53, 0x0000ffff
    s_mov_b32 s54, 0
    s_lshl_b32 s40, s36, 2
    s_add_u32 s40, s40, {CTL+48}
    v_mov_b32 v{VFS}, s40
    v_mov_b32 v{VONE}, 0
    s_mov_b32 s57, {env('HIT', 1)}
    {vinit()}
    s_waitcnt lgkmcnt(0)
    v_mfma_f32_32x32x16_bf16 {vr(S[0],16)}, {vr(KB[0],4)}, {vr(Q[0],4)}, 0
    v_mfma_f32_32x32x16_bf16 {vr(S[1],16)}, {vr(KB[0],4)}, {vr(Q[1],4)}, 0
    s_nop 7
    s_nop 3
    """)
    for g in range(2):
        d = 2 + g
        a(f"v_max3_f32 v{d}, v{S[g]}, v{S[g]+1}, v{S[g]+2}")
        for i in range(3, 15, 2): a(f"v_max3_f32 v{d}, v{d}, v{S[g]+i}, v{S[g]+i+1}")
        a(f"v_max_f32 v{d}, v{d}, v{S[g]+15}")
    a(f"""
    M_MAXX:
    v_mov_b32 v{P}, v2
    v_mov_b32 v{P+1}, v3
    s_nop 1
    v_permlane32_swap_b32 v2, v{P}
    v_permlane32_swap_b32 v3, v{P+1}
    s_nop 1
    v_max_f32 v2, v2, v{P}
    v_max_f32 v3, v3, v{P+1}
    v_sub_f32 v2, 0, v2
    v_sub_f32 v3, 0, v3
    """)
    for g in range(2):
        for r in range(16): a(f"v_mov_b32 v{C[g]+r}, v{2+g}")
        for r in range(16): a(f"v_mov_b32 v{O[g]+r}, 0")
    for r in range(4): a(f"v_mov_b32 v{P+4+r}, 0")
    def vread(buf, tile):
        off = tile*2048
        return f"""
        s_mov_b64 exec, s[52:53]
        ds_read_b128 {vr(VB[buf],4)}, v2 offset:{off+1024}
        ds_read_b128 {vr(VB[buf]+4,4)}, v2 offset:{off+1024+256}
        s_mov_b64 exec, -1
        """
    def kread(buf, tile): return f"ds_read_b128 {vr(KB[buf],4)}, v2 offset:{tile*2048}"
    a(f"""
    v_mov_b32 v2, v1
    v_mov_b32 v{VCA}, {CTL+4}
    {kread(0, 0)}
    {vread(0, 0)}
    {kread(1, 1)}
    s_waitcnt lgkmcnt(3)
    v_mfma_f32_32x32x16_bf16 {vr(S[0],16)}, {vr(KB[0],4)}, {vr(Q[0],4)}, {vr(C[0],16)}
    s_mov_b32 s55, 0
    s_nop 7
    s_nop 3
    M_BLOOP:
    {stamp_s("s55", 16)}
    s_cmp_eq_u32 s55, s57
    s_cbranch_scc1 M_HST
    M_BLOOP2:
    """)
    def step(g, t):
        p = t & 1
        sa = S[g]
        e = lambda i: f"v_exp_f32 v{sa+i}, v{sa+i}"
        c = lambda i: f"v_cvt_pk_bf16_f32 v{P+i}, v{sa+2*i}, v{sa+2*i+1}"
        L = [e(0), e(1), e(2), e(3)]
        if g == 0:
            L.append(f"v_mfma_f32_32x32x16_bf16 {vr(O[1],16)}, {vr(VB[1-p]+4,4)}, {vr(P+4,4)}, {vr(O[1],16)}")
            L.append("s_waitcnt lgkmcnt(0)")
        else:
            L.append(f"v_mfma_f32_32x32x16_bf16 {vr(O[0],16)}, {vr(VB[p]+4,4)}, {vr(P+4,4)}, {vr(O[0],16)}")
            if t == 5: L.append("s_cmp_lt_u32 s40, 4")
        L += [e(4), e(5), e(6), e(7), c(0), c(1)]
        if g == 0:
            if t == 5: L.append(f"v_readfirstlane_b32 s40, v{VCH}")
            L.append(f"v_mfma_f32_32x32x16_bf16 {vr(S[1],16)}, {vr(KB[p],4)}, {vr(Q[1],4)}, {vr(C[1],16)}")
            L.append(vread(1-p, t+1))
        else:
            L.append(f"v_mfma_f32_32x32x16_bf16 {vr(S[0],16)}, {vr(KB[1-p],4)}, {vr(Q[0],4)}, {vr(C[0],16)}")
            if t == 5: L.append("s_cbranch_scc1 M_SPIN\nM_SPIND:")
        L += [e(8), c(2), c(3), e(9), e(10), e(11), e(12)]
        L.append(f"v_mfma_f32_32x32x16_bf16 {vr(O[g],16)}, {vr(VB[p],4)}, {vr(P,4)}, {vr(O[g],16)}")
        if g == 0:
            if t == 4: L.append("s_waitcnt vmcnt(0)")
            L.append(kread(p, t+2))
            if t == 4:
                L.append(f"ds_read_b32 v{VCH}, v{VCA}")
                L.append(f"ds_write_b32 v{VFS}, v{VONE}")
        L += [e(13), e(14), e(15), c(4), c(5), c(6), c(7)]
        return "\n".join(L)
    for t in range(8):
        a(step(0, t)); a(step(1, t))
    a(f"""
    v_add_u32 v2, 16384, v2
    v_add_u32 v{VCA}, 4, v{VCA}
    s_add_u32 s55, s55, 1
    s_cmp_lt_u32 s55, 8
    s_cbranch_scc1 M_BLOOP
    v_mov_b32 v3, {CTL+64}
    v_mfma_f32_32x32x16_bf16 {vr(O[1],16)}, {vr(VB[1]+4,4)}, {vr(P+4,4)}, {vr(O[1],16)}
    {stamp(24)}
    s_lshl_b32 s40, s36, 2
    s_add_u32 s40, s40, {CTL+80}
    v_mov_b32 v2, s40
    M_GW:
    ds_read_b32 v4, v2                      ; gseen
    ds_read_b32 v5, v3                      ; epoch
    s_waitcnt lgkmcnt(0)
    v_readfirstlane_b32 s40, v4
    s_cmp_lg_u32 s40, 0
    s_cbranch_scc1 M_GWD
    s_sleep 1
    s_branch M_GW
    M_GWD:
    v_and_b32 v2, 31, v0
    v_lshlrev_b32 v2, 2, v2
    s_lshl_b32 s40, s36, 8
    s_add_u32 s40, s40, {GL}
    v_add_u32 v2, s40, v2
    ds_read_b32 v6, v2
    ds_read_b32 v7, v2 offset:128
    {stamp(4)}
    """)
    for g in range(2):
        o = O[g]; d = 2 + g
        a(f"""
        v_add_f32 v{d}, |v{o}|, |v{o+1}|
        v_add_f32 v4, |v{o+2}|, |v{o+3}|
        v_add_f32 v{d}, v{d}, |v{o+4}|
        v_add_f32 v4, v4, |v{o+5}|
        v_add_f32 v{d}, v{d}, |v{o+6}|
        v_add_f32 v4, v4, |v{o+7}|
        v_add_f32 v{d}, v{d}, v{o+8}
        v_add_f32 v{d}, v{d}, v4
        """)
    a(f"""
    v_add_f32 v2, v2, v3
    v_rcp_f32 v3, v{O[0]+8}
    v_rcp_f32 v4, v{O[1]+8}
    s_mov_b32 s40, 0x7b800000               ; 2^120
    v_cmp_nlt_f32 vcc, v2, s40
    s_cmp_lg_u32 s54, 0
    s_cbranch_scc1 M_FIN
    s_cbranch_vccnz M_SLOW
    M_FIN:
    s_waitcnt lgkmcnt(0)
    v_mul_f32 v3, v3, v6
    v_mul_f32 v4, v4, v7
    s_lshl_b32 s40, s35, 2
    s_add_u32 s40, s40, s36                 ; tokb64
    s_lshl_b32 s41, s40, 16
    s_lshl_b32 s42, s34, 10
    s_add_u32 s41, s41, s42
    s_add_u32 s41, s41, {OF}
    s_add_u32 s42, s41, 32768
    """)
    for g in range(2):
        for r in range(8): a(f"v_mul_f32 v{O[g]+r}, v{3+g}, v{O[g]+r}")
        for r in range(4): a(f"v_cvt_pk_bf16_f32 v{P+4*g+r}, v{O[g]+2*r}, v{O[g]+2*r+1}")
        a(f"buffer_store_dwordx4 {vr(P+4*g,4)}, v1, s[16:19], s{41+g} offen sc1")
    a(f"""
    s_lshl_b32 s40, s40, 7
    s_lshl_b32 s41, s34, 2
    s_add_u32 s40, s40, s41
    s_add_u32 s40, s40, {F2}
    v_mov_b32 v2, 0
    s_waitcnt vmcnt(0)
    s_mov_b64 exec, 1
    buffer_store_dword v5, v2, s[16:19], s40 offen sc1
    s_mov_b64 exec, -1
    {stamp(3)}
    {stamp_flush(20)}
    s_endpgm
    M_HST:
    {hstores()}
    v_mov_b32 v{VONE}, 1
    s_mov_b32 s57, 100
    s_branch M_BLOOP2
    M_SPIN:
    ds_read_b32 v{VCH}, v{VCA}
    s_waitcnt lgkmcnt(0)
    v_readfirstlane_b32 s40, v{VCH}
    s_cmp_ge_u32 s40, 4
    s_cbranch_scc1 M_SPIND
    s_sleep 1
    s_branch M_SPIN
    M_SLOW:
    s_waitcnt lgkmcnt(0)
    s_mov_b32 s54, 1
    s_lshl_b32 s40, s36, 2
    s_add_u32 s40, s40, {CTL+48}
    v_mov_b32 v{VFS}, s40
    v_mov_b32 v{VONE}, 1
    {vinit()}
    v_mov_b32 v4, v1
    v_mov_b32 v2, 0xff800000
    v_mov_b32 v3, 0xff800000
    s_mov_b32 s55, 0
    M_SL:
    ds_read_b128 {vr(KB[0],4)}, v4
    s_waitcnt lgkmcnt(0)
    v_mfma_f32_32x32x16_bf16 {vr(S[0],16)}, {vr(KB[0],4)}, {vr(Q[0],4)}, 0
    v_mfma_f32_32x32x16_bf16 {vr(S[1],16)}, {vr(KB[0],4)}, {vr(Q[1],4)}, 0
    v_add_u32 v4, 2048, v4
    s_nop 7
    s_nop 3
    """)
    for g in range(2):
        for i in range(0, 16, 2): a(f"v_max3_f32 v{2+g}, v{2+g}, v{S[g]+i}, v{S[g]+i+1}")
    a(f"""
    s_add_u32 s55, s55, 1
    s_cmp_lt_u32 s55, 64
    s_cbranch_scc1 M_SL
    s_branch M_MAXX
    M_END:
    s_endpgm
    """)
    return a.text()

def check_ws(R, bf, ws, cmp, torch, np):
    k, v, h, g, o, w2, wo = (R[n] for n in "k v h g o w2 wo".split())
    dperm = torch.tensor([[4*hh + j if j < 4 else 8 + 4*hh + (j-4) for j in range(8)] for hh in range(2)])
    kap = torch.tensor([(m & 7) | ((m >> 3 & 1) << 4) | ((m >> 4 & 1) << 3) for m in range(32)])
    Ke = k.cpu().reshape(64, 32, 32, 16)[:, kap][:, :, :, dperm].permute(2, 0, 3, 1, 4).reshape(32, 64, 512)
    KV = bf(KVF, 2*2048*512).reshape(32, 64, 2, 512)
    cmp("K", KV[:, :, 0], Ke)
    vkey = torch.tensor([[[16*(j>>2) + 8*mf + 4*hh + (j&3) for j in range(8)] for mf in range(2)] for hh in range(2)])
    Ve = v.cpu().reshape(64, 32, 32, 16)[:, vkey].permute(4, 0, 1, 2, 5, 3).reshape(32, 64, 512)
    cmp("V", KV[:, :, 1], Ve)
    fidx = torch.tensor([[[32*(ks>>1) + (4*(2*(ks&1)+hh) + j if j < 4 else 16 + 4*(2*(ks&1)+hh) + j - 4) for j in range(8)] for hh in range(2)] for ks in range(112)])
    He = h.cpu().reshape(64, 32, 1792)[:, :, fidx].permute(0, 2, 3, 1, 4).reshape(-1)
    cmp("H", bf(HF, 2048*1792), He)
    sig = torch.tensor([(m & 3) | ((m >> 2 & 1) << 3) | ((m >> 3 & 1) << 2) | (m & 16) for m in range(32)])
    W2e = w2.cpu()[fidx].reshape(112, 2, 8, 16, 32)[:, :, :, :, sig].permute(3, 0, 1, 4, 2).reshape(-1)
    cmp("W2F", bf(W2F, 1792*512), W2e)
    oidx = torch.stack([dperm + 16*ks for ks in range(32)])
    Woe = wo.cpu()[oidx].reshape(32, 2, 8, 16, 32)[:, :, :, :, sig].permute(3, 0, 1, 4, 2).reshape(-1)
    cmp("WOF", bf(WOF, 512*512), Woe)
    cmp("G", torch.from_numpy(ws[GF:GF+8192].view(np.float32).copy()), g.cpu())
    Oe = (o * g[:, None, None]).cpu().reshape(64, 32, 32, 16)[:, :, :, dperm].permute(0, 2, 3, 1, 4).reshape(-1)
    cmp("O", bf(OF, 2048*512), Oe)

HEADER = f"""; Kernarg layout for this problem (80 bytes, ptrs only, base s[0:1]):
; @launch grid=(256,1,1) block=(512,1,1) lds={LDS}
.amdgcn_target "amdgcn-amd-amdhsa--gfx950"
.text
.globl {KN}
.p2align 8
.type {KN},@function
{KN}:
"""
FOOTER = f""".section .rodata,"a"
.p2align 6
.amdhsa_kernel {KN}
  .amdhsa_next_free_vgpr 256
  .amdhsa_next_free_sgpr 102
  .amdhsa_accum_offset 256
  .amdhsa_group_segment_fixed_size 0
  .amdhsa_kernarg_size 80
  .amdhsa_user_sgpr_count 2
  .amdhsa_user_sgpr_kernarg_segment_ptr 1
  .amdhsa_system_sgpr_workgroup_id_x 1
.end_amdhsa_kernel
"""
if __name__ == "__main__":
    out = HEADER + gen() + FOOTER
    path = sys.argv[1] if len(sys.argv) > 1 else f"cdna_kernels/{NAME}.s"
    open(path, "w").write(out)
    print("wrote", path, len(out), "bytes")
```
